```python
import torch

def _softmax(x, axis=-1):
    return torch.softmax(x, dim=axis)

def _gelu(x):
    return torch.nn.functional.gelu(x, approximate='tanh')

def _silu(x):
    return torch.nn.functional.silu(x)

def _sigmoid(x):
    return torch.sigmoid(x)

def _layernorm(x, axis=-1, eps=1e-05):
    m = x.mean(dim=axis, keepdim=True)
    v = x.var(dim=axis, keepdim=True, unbiased=False)
    return (x - m) / torch.sqrt(v + eps)

def _scatter_add(tgt, idx, src, axis=0):
    return tgt.clone().index_add_(axis, idx, src)

def _segment_sum(src, seg, n):
    out = torch.zeros((n,) + src.shape[1:], dtype=src.dtype)
    return out.index_add_(0, seg, src)

def _pad(x, pw):
    flat = tuple((v for pair in reversed(pw) for v in pair))
    return torch.nn.functional.pad(x, flat)
kernel_name = 'adaLN_cond__compressed_kv_cla__dense_activation_relu__prompt'

def setup_inputs():

    _w = lambda a: (lambda t: t.to(torch.bfloat16) if t.is_floating_point() else t)(torch.as_tensor(a))

    def _A_setup():
        B, H, Sq, Sk, D, M = (1, 32, 2048, 2048, 128, 1024)
        Dc = 4 * D
        return {'x': _w((lambda *s: torch.randn(*s, dtype=torch.bfloat16) * 0.05)(B, Sq, M)), 'c_kv': _w((lambda *s: torch.randn(*s, dtype=torch.bfloat16) * 1.6)(B, Sk, Dc)), 'w_q': _w((lambda *s: torch.randn(*s, dtype=torch.bfloat16) * 0.8)(M, H, D) * M ** (-0.5)), 'w_uk': _w((lambda *s: torch.randn(*s, dtype=torch.bfloat16) * 0.8)(Dc, H, D) * Dc ** (-0.5)), 'w_uv': _w((lambda *s: torch.randn(*s, dtype=torch.bfloat16) * 1.6)(Dc, H, D) * Dc ** (-0.5)), 'w_o': _w((lambda *s: torch.randn(*s, dtype=torch.bfloat16) * 1.6)(H, D, M) * (H * D) ** (-0.5))}
    _A_in = _A_setup()

    def _B_setup():
        B, S, D, Dff = (1, 2048, 1024, 3584)
        return {'x': _w((lambda *s: torch.randn(*s, dtype=torch.bfloat16) * 0.05)(B, S, D)), 'w1': _w((lambda *s: torch.randn(*s, dtype=torch.bfloat16) * 0.05)(D, Dff)), 'w2': _w((lambda *s: torch.randn(*s, dtype=torch.bfloat16) * 0.05)(Dff, D))}
    _B_in = _B_setup()
    return {'A_x': _A_in['x'], 'A_c_kv': _A_in['c_kv'], 'A_w_q': _A_in['w_q'], 'A_w_uk': _A_in['w_uk'], 'A_w_uv': _A_in['w_uv'], 'A_w_o': _A_in['w_o'], 'B_x': _B_in['x'], 'B_w1': _B_in['w1'], 'B_w2': _B_in['w2'], 'c': _w((lambda *s: torch.randn(*s, dtype=torch.bfloat16) * 0.1)(1, 1024) * 8.0), 'w_mod': _w((lambda *s: torch.randn(*s, dtype=torch.bfloat16) * 0.1)(1024, 6 * 1024) * 1024 ** (-0.5) * 8.0)}

def reference(A_x, A_c_kv, A_w_q, A_w_uk, A_w_uv, A_w_o, B_x, B_w1, B_w2, c, w_mod):

    def _A_ref(x, c_kv, w_q, w_uk, w_uv, w_o):
        B, Sq, M = (x.shape[0], x.shape[1], x.shape[2])
        Sk = c_kv.shape[1]
        H, D = (w_q.shape[1], w_q.shape[2])
        q = torch.einsum('bqm,mhd->bhqd', x, w_q)
        k = torch.einsum('bkc,chd->bhkd', c_kv, w_uk)
        v = torch.einsum('bkc,chd->bhkd', c_kv, w_uv)
        scores = torch.einsum('bhqd,bhkd->bhqk', q, k) * D ** (-0.5)
        off = Sk - Sq
        qi = torch.arange(Sq)[:, None]
        kj = torch.arange(Sk)[None, :]
        cmask = kj <= qi + off
        scores = torch.where(cmask[None, None], scores, -1000000000.0)
        p = _softmax(scores, axis=-1)
        ctx = torch.einsum('bhqk,bhkd->bhqd', p, v)
        return torch.einsum('bhqd,hdm->bqm', ctx, w_o)

    def _B_ref(x, w1, w2):
        h = torch.einsum('bsd,df->bsf', x, w1)
        zero = torch.zeros_like(h)
        h = torch.maximum(h, zero)
        return torch.einsum('bsf,fd->bsd', h, w2)
    x = A_x
    mod = (_silu(c) @ w_mod).reshape(c.shape[0], 6, 1, -1)
    sa, ca, ga, sb, cb, gb = (mod[:, 0].clone(), mod[:, 1].clone(), mod[:, 2].clone(), mod[:, 3].clone(), mod[:, 4].clone(), mod[:, 5].clone())
    h = _layernorm(x, axis=-1) * (1 + ca) + sa
    x = x + ga * _A_ref(h, A_c_kv, A_w_q, A_w_uk, A_w_uv, A_w_o)
    h = _layernorm(x, axis=-1) * (1 + cb) + sb
    x = x + gb * _B_ref(h, B_w1, B_w2)
    return x
```

```python
import struct
def f2u(x): return struct.unpack('<I', struct.pack('<f', x))[0]
def fl(x): return '0x%08x' % f2u(x)

MB = 1 << 20
WS_MOD, WS_H, WS_K, WS_V, WS_CTX, WS_X1, WS_X1G, WS_ST, WS_FF = 0, 1*MB, 8*MB, 24*MB, 40*MB, 56*MB, 60*MB, 64*MB, 72*MB
KA = dict(x=0, ckv=8, wq=16, wuk=24, wuv=32, wo=40, w1=56, w2=64, c=72, wmod=80, out=88, dbg=96, ws=104)

def R(p, b, n=1):
    return f'{p}{b}' if n == 1 else f'{p}[{b}:{b+n-1}]'
def v(b, n=1): return R('v', b, n)
def a(b, n=1): return R('a', b, n)
def s(b, n=1): return R('s', b, n)

class Asm:
    def __init__(self): self.L = []
    def __call__(self, *xs):
        for x in xs:
            if isinstance(x, (list, tuple)): self(*x)
            else: self.L.extend(t.strip() for t in x.split('\n') if t.strip())
    def text(self): return '\n'.join(('' if l.endswith(':') or l.startswith('.') else '  ') + l for l in self.L) + '\n'

def weave(mf, streams):
    n = len(mf); gaps = [[] for _ in range(n)]
    for items, g0, g1 in streams:
        k = len(items); g1 = min(g1, n-1); w = g1 - g0 + 1
        for i, it in enumerate(items):
            gaps[g0 + (i * w) // k].append(it)
    out = []
    for m, g in zip(mf, gaps):
        out.append(m); out.extend(g)
    return out

def srd(A, d, ptr, off, size, back=0):
    o = off - back
    if o >= 0:
        A(f's_add_u32 s{d}, s{ptr}, {o}\ns_addc_u32 s{d+1}, s{ptr+1}, 0')
    else:
        A(f's_sub_u32 s{d}, s{ptr}, {-o}\ns_subb_u32 s{d+1}, s{ptr+1}, 0')
    A(f's_and_b32 s{d+1}, s{d+1}, 0xffff\ns_mov_b32 s{d+2}, {size+back}\ns_mov_b32 s{d+3}, 0x20000')

def header(A, name, nwg):
    A(f'.globl {name}\n.p2align 8\n.type {name},@function\n{name}:')
    A(f's_cmp_ge_u32 s2, {nwg}\ns_cbranch_scc1 {name}_end')

def kd(name, nv=512, acc=256):
    return f'''.amdhsa_kernel {name}
  .amdhsa_next_free_vgpr {nv}
  .amdhsa_next_free_sgpr 102
  .amdhsa_accum_offset {acc}
  .amdhsa_group_segment_fixed_size 0
  .amdhsa_kernarg_size 112
  .amdhsa_user_sgpr_count 2
  .amdhsa_user_sgpr_kernarg_segment_ptr 1
  .amdhsa_system_sgpr_workgroup_id_x 1
.end_amdhsa_kernel
'''

def mfma(d, x, y, c):
    return f'v_mfma_f32_32x32x16_bf16 {d}, {x}, {y}, {c}'

class Gemm:
    def __init__(g, **k): g.__dict__.update(k)
    def ppw(g): return g.KS * g.NT // 4
    def stage_bytes(g): return g.KS * g.NT * 1024
    def setup_w(g, A, vl, vt, sw, colbytes_sgpr=None):
        NH = g.NT // 2
        A(f'v_bfe_u32 v{vt}, v{vl}, 2, 2')
        A(f'v_lshlrev_b32 v{g.vB0}, 7, v{vt}')
        A(f'v_bfe_u32 v{vt}, v{vl}, 3, 1\nv_lshl_add_u32 v{g.vB0}, v{vt}, 6, v{g.vB0}')
        A(f'v_bfe_u32 v{vt}, v{vl}, 4, 1\nv_lshl_add_u32 v{g.vB0}, v{vt}, 5, v{g.vB0}')
        A(f'v_and_b32 v{vt}, 3, v{vl}\nv_lshl_add_u32 v{g.vB0}, v{vt}, 3, v{g.vB0}')
        A(f'v_lshrrev_b32 v{vt}, 5, v{vl}')
        A(f'v_mul_u32_u24 v{vt}, {512 if g.amode=="fm" else NH*1024}, v{vt}\nv_add_u32 v{g.vB0}, v{g.vB0}, v{vt}')
        if g.bbase: A(f'v_add_u32 v{g.vB0}, {g.bbase}, v{g.vB0}')
        A(f'v_xor_b32 v{g.vB1}, 64, v{g.vB0}')
        A(f'v_lshrrev_b32 v{vt}, 3, v{vl}\nv_mul_u32_u24 v{vt}, {g.ldw}, v{vt}')
        A(f'v_bfe_u32 v{vt+1}, v{vl}, 4, 1\nv_lshlrev_b32 v{vt+1}, 2, v{vt+1}\nv_and_b32 v{vt+2}, 7, v{vl}\nv_xor_b32 v{vt+1}, v{vt+1}, v{vt+2}')
        A(f'v_lshl_add_u32 v{vt}, v{vt+1}, 4, v{vt}')
        P = g.ppw()
        rows_per_wave = (P // NH) * 8
        A(f's_mul_i32 s{g.sWB}, s{sw}, {rows_per_wave*g.ldw}\nv_add_u32 v{vt}, s{g.sWB}, v{vt}')
        for i in range(P):
            kr, n64 = i // NH, i % NH
            A(f'v_add_u32 v{g.vD+i}, {4096 + kr*8*g.ldw + g.ncol(n64) - (i%4)*1024}, v{vt}')
        A(f's_mul_i32 s{g.sWB}, s{sw}, {P*1024}\ns_add_u32 s{g.sWB}, s{g.sWB}, {g.bbase}')
    def w_dma(g, st):
        NH = g.NT // 2; out = []
        for i in range(g.ppw()):
            it = []
            if i % 4 == 0: it += [f's_add_u32 m0, s{g.sWB}, {st*g.stage_bytes() + (i//4)*4096}', 's_nop 0']
            it.append(f'buffer_load_dwordx4 v{g.vD+i}, {s(g.sB[i%NH],4)}, s{g.sK} offen offset:{(i%4)*1024} lds')
            out.append(it)
        out.append([f's_add_u32 s{g.sK}, s{g.sK}, {g.KS*16*g.ldw}'])
        return out
    def afrag(g, slot, j, mt):
        p, b = g.afr
        if g.amode == 'fm': return R(p, b + ((slot * g.KS + j) * g.MT + mt) * 4, 4)
        return R(p, b + (slot * g.MT + mt) * 4, 4)
    def a_load(g, slot, js):
        out = []
        for j in js:
            for mt in range(g.MT):
                it = []
                if j % 4 == 0 and j > 0 and mt == 0: it.append(f's_add_u32 s{g.sKA}, s{g.sKA}, 4096')
                it.append(f'buffer_load_dwordx4 {g.afrag(slot,j,mt)}, v{g.vA[mt]}, {s(g.sA,4)}, s{g.sKA} offen offset:{(j%4)*1024}')
                if j == g.KS-1 and mt == g.MT-1: it.append(f's_add_u32 s{g.sKA}, s{g.sKA}, 4096')
                out.append(it)
        return out
    def a_dma(g, st):
        out = []
        for i in range(8):
            it = []
            if i % 4 == 0: it += [f's_add_u32 m0, s{g.sWA}, {st*32768 + (i//4)*4096}', 's_nop 0']
            it.append(f'buffer_load_dwordx4 v{g.vAD+i}, {s(g.sA,4)}, s{g.sKA} offen offset:{(i%4)*1024} lds')
            out.append(it)
        out.append([f's_add_u32 s{g.sKA}, s{g.sKA}, 128'])
        return out
    def nvm(g):
        return g.ppw() + (g.KS * g.MT if g.amode == 'fm' else 8)
    def wfrag(g, par, jj, nt): return g.bfr + ((par * g.G + jj) * g.NT + nt) * 4
    def reads(g, st, ss, par):
        NH = g.NT // 2; out = []
        for jj in range(g.G):
            j = ss * g.G + jj
            if g.amode == 'lds':
                for mt in range(g.MT):
                    out.append(f'ds_read_b128 {g.afrag(par,0,mt)}, v{g.vAR+j} offset:{st*32768 + mt*4096}')
            for nt in range(g.NT):
                r = g.wfrag(par, jj, nt); va = g.vB1 if nt & 1 else g.vB0
                for rd in range(2):
                    if g.amode == 'fm': o = (2*j + rd) * NH * 1024
                    else: o = 2*j * NH * 1024 + rd * 512
                    o += st * g.stage_bytes() + (nt >> 1) * 1024
                    assert o < 65536
                    out.append(f'ds_read_b64_tr_b16 {v(r+2*rd,2)}, v{va} offset:{o}')
        return out
    def mfmas(g, slot, ss, par, zero=False):
        out = []
        for jj in range(g.G):
            j = ss * g.G + jj
            for nt in range(g.NT):
                for mt in range(g.MT):
                    x = g.afrag(slot, j, mt) if g.amode == 'fm' else g.afrag(par, 0, mt)
                    w = v(g.wfrag(par, jj, nt), 4); d = g.acc(mt, nt)
                    c = '0' if (zero and jj == 0) else d
                    out.append(mfma(d, w, x, c) if g.trans(nt) else mfma(d, x, w, c))
        return out
    def issue_set(g, slot):
        return (g.a_load(slot, range(g.KS)) if g.amode == 'fm' else g.a_dma(slot)) + g.w_dma(slot)
    def slab(g, A, sl, first=False, loads=True, tail_loads=True, last=False, vm=None, side=None):
        D = g.D; st = sl % D; NS = g.KS // g.G; n = g.G * g.NT * g.MT
        side = side or {}
        for ss in range(NS):
            par = (sl * NS + ss) & 1
            lastss = ss == NS - 1
            streams = []
            if lastss and not last:
                A(f's_waitcnt vmcnt({(D-2)*g.nvm() if vm is None else vm}) lgkmcnt(0)\ns_barrier')
                streams.append((g.reads((sl+1) % D, 0, par ^ 1), 0, max(0, n*3//4-1)))
                if loads:
                    if g.amode == 'fm':
                        streams.append((g.w_dma(st) + g.a_load(st, range(g.KS - g.G)), 0, n-1))
                    else:
                        streams.append((g.w_dma(st) + g.a_dma(st), 0, n-1))
            else:
                A('s_waitcnt lgkmcnt(0)')
                if not lastss: streams.append((g.reads(st, ss+1, par ^ 1), 0, max(0, n*3//4-1)))
            if ss == 0 and tail_loads and g.amode == 'fm' and not first:
                streams.append((g.a_load((sl-1) % D, range(g.KS - g.G, g.KS)), 0, n//2))
            if ss in side: streams.append((side[ss], 0, n-1))
            A(weave(g.mfmas(st, ss, par, zero=(first and ss == 0)), streams))
```

```python
from core import *
LOG2E = 1.4426950408889634
QSCALE = LOG2E / 128**0.5
def bf16_round(A, r, t):
    A(f'v_cvt_pk_bf16_f32 v{r}, v{r}, v{r}\nv_and_b32 v{r}, 0xffff0000, v{r}')

def allreduce(rs, ts):
    o = []
    for sh in (1, 2, 4, 8):
        if len(rs) < 3: o.append('s_nop %d' % (2 - len(rs)))
        for r in rs: o.append(f'v_add_f32_dpp v{r}, v{r}, v{r} row_ror:{sh} row_mask:0xf bank_mask:0xf')
    for op in ('v_permlane16_swap_b32', 'v_permlane32_swap_b32'):
        for r, t in zip(rs, ts): o.append(f'v_mov_b32 v{t}, v{r}')
        o.append('s_nop 1')
        for r, t in zip(rs, ts): o.append(f'{op} v{r}, v{t}')
        o.append('s_nop 1')
        for r, t in zip(rs, ts): o.append(f'v_add_f32 v{r}, v{r}, v{t}')
    return o

def kv_kernel(A, name='kv_kernel'):
    header(A, name, 256)
    A('s_load_dwordx4 s[4:7], s[0:1], 0\ns_load_dwordx4 s[8:11], s[0:1], 16\ns_load_dwordx2 s[12:13], s[0:1], 32')
    A('s_load_dwordx4 s[16:19], s[0:1], 72\ns_load_dwordx4 s[20:23], s[0:1], 96')
    VL, VT = 1, 2
    A('v_and_b32 v1, 63, v0\nv_lshrrev_b32 v2, 6, v0\ns_nop 0\nv_readfirstlane_b32 s3, v2')
    A('s_and_b32 s24, s2, 7\ns_lshr_b32 s25, s2, 3')
    A('s_and_b32 s26, s25, 3\ns_lshl_b32 s27, s24, 2\ns_add_u32 s26, s26, s27')
    A('s_lshr_b32 s27, s25, 2')
    A('s_lshl_b32 s28, s24, 5\ns_add_u32 s28, s28, s25')
    A('s_waitcnt lgkmcnt(0)')
    SUK, SUV, SCK, SWM, SC, SX, SWS, SDB, SWQ = 40, 44, 48, 52, 56, 60, 64, 68, 72
    srd(A, SUK, 10, 0, 4*MB, 4096); srd(A, SUV, 12, 0, 4*MB, 4096); srd(A, SCK, 6, 0, 2*MB)
    srd(A, SWM, 18, 0, 1024*6144*2); srd(A, SC, 16, 0, 2048); srd(A, SX, 4, 0, 4*MB)
    srd(A, SWS, 22, 0, 40*MB); srd(A, SDB, 20, 0, 256); srd(A, SWQ, 8, 0, 8*MB)
    g = Gemm(MT=2, NT=8, G=1, KS=4, D=2, amode='lds', ldw=8192, acc=lambda mt, nt: a((mt*8+nt)*16, 16), bfr=64, afr=('v', 128),
             vB0=6, vB1=7, vD=8, vAD=16, vAR=24, sB=[SUK, SUK, SUV, SUV], sK=30, sWB=31, sA=SCK, sKA=32, sWA=33, bbase=65536,
             trans=lambda nt: nt < 4, ncol=lambda n64: (n64 & 1)*128)
    g.setup_w(A, VL, VT, 3)
    A('s_lshl_b32 s30, s26, 8')
    A('v_lshrrev_b32 v2, 3, v1\nv_lshlrev_b32 v2, 10, v2\nv_lshrrev_b32 v3, 4, v1\nv_and_b32 v4, 7, v1')
    A('v_xor_b32 v5, v3, v4\nv_lshl_add_u32 v16, v5, 4, v2\nv_xor_b32 v5, 4, v5\nv_lshl_add_u32 v17, v5, 4, v2')
    for i in range(7, 0, -1):
        A(f'v_add_u32 v{16+i}, {i*8192 - (i%4)*1024}, v{16+(i&1)}')
    A('s_lshl_b32 s32, s27, 18\ns_lshl_b32 s33, s3, 16\ns_add_u32 s32, s32, s33\ns_lshl_b32 s33, s3, 13')
    A('v_and_b32 v2, 31, v1\nv_lshlrev_b32 v3, 7, v2\nv_add_u32 v3, s33, v3\nv_bfe_u32 v2, v1, 1, 3\nv_lshrrev_b32 v4, 5, v1\nv_xor_b32 v2, v2, v4')
    for j in range(4): A(f'v_xor_b32 v4, {2*j}, v2\nv_lshl_add_u32 v{24+j}, v4, 4, v3')
    A(g.issue_set(0), g.issue_set(1))
    GD, GC, GA, XR, CO = 160, 224, 240, 144, 160
    A('v_lshrrev_b32 v2, 2, v0\nv_mul_u32_u24 v3, 12288, v2\nv_and_b32 v4, 3, v0\nv_lshl_add_u32 v3, v4, 4, v3')
    A('s_mul_i32 s34, s28, 48\nv_add_u32 v3, s34, v3\nv_cmp_eq_u32 vcc, 3, v4\nv_mov_b32 v5, 0x40000000\nv_lshlrev_b32 v2, 1, v2\nv_cndmask_b32 v3, v3, v5, vcc')
    for p in range(16): A(f'buffer_load_ushort v{GC+p}, v2, {s(SC,4)}, 0 offen offset:{p*128}')
    for p in range(16): A(f's_mov_b32 s34, {p*64*12288}\nbuffer_load_dwordx4 {v(GD+4*p,4)}, v3, {s(SWM,4)}, s34 offen')
    A('s_lshl_b32 s35, s28, 3\ns_lshl_b32 s36, s3, 1\ns_add_u32 s35, s35, s36')
    A('s_lshl_b32 s34, s35, 11\nv_lshlrev_b32 v28, 5, v1')
    for r in range(2):
        for h in range(2): A(f'buffer_load_dwordx4 {v(XR+8*r+4*h,4)}, v28, {s(SX,4)}, s34 offen offset:{r*2048+h*16}')
    NSIDE = 36
    A(f's_waitcnt vmcnt({NSIDE+16})\ns_barrier')
    A(g.reads(0, 0, 0))
    silu = []
    for p in range(16):
        c = GC+p
        silu += [f'v_lshlrev_b32 v{c}, 16, v{c}', f'v_mul_f32 v2, {fl(-LOG2E)}, v{c}', 'v_exp_f32 v2, v2', 's_nop 0', 'v_add_f32 v2, 1.0, v2',
                 'v_rcp_f32 v2, v2', 's_nop 0', f'v_mul_f32 v{c}, v{c}, v2', f'v_cvt_pk_bf16_f32 v{c}, v{c}, v{c}', f'v_and_b32 v{c}, 0xffff0000, v{c}']
    fma = []
    for p in range(16):
        for i in range(4):
            d = GD+4*p+i
            op = 'v_mul_f32' if p == 0 else 'v_fmac_f32'
            fma += [f'v_lshlrev_b32 v2, 16, v{d}', f'v_and_b32 v3, 0xffff0000, v{d}', f'{op} v{GA+2*i}, v2, v{GC+p}', f'{op} v{GA+2*i+1}, v3, v{GC+p}']
    red = []
    for sh in (4, 8):
        red += [f'v_add_f32_dpp v{GA+i}, v{GA+i}, v{GA+i} row_ror:{sh} row_mask:0xf bank_mask:0xf' for i in range(8)]
    red += ['v_lshrrev_b32 v2, 4, v0', 'v_and_b32 v3, 3, v0', 'v_lshlrev_b32 v2, 7, v2', 'v_lshl_add_u32 v2, v3, 5, v2', 'v_add_u32 v2, 131072, v2',
            f'ds_write_b128 v2, {v(GA,4)}', f'ds_write_b128 v2, {v(GA+4,4)} offset:16']
    fin = ['v_lshlrev_b32 v2, 2, v1', 'v_add_u32 v2, 131072, v2']
    fin += [f'ds_read_b32 v{GD+i}, v2 offset:{i*128}' for i in range(16)]
    fin2 = [f'v_add_f32 v{GD}, v{GD}, v{GD+i}' for i in range(1, 16)]
    fin2 += [f'v_cvt_pk_bf16_f32 v{GD}, v{GD}, v{GD}', f'v_and_b32 v{GD}, 0xffff0000, v{GD}',
             'v_lshlrev_b32 v2, 2, v0', 's_mul_i32 s34, s28, 96', 'v_add_u32 v2, s34, v2', 'v_cmp_gt_u32 vcc, 24, v0', 'v_mov_b32 v3, 0x40000000', 's_nop 0',
             'v_cndmask_b32 v2, v3, v2, vcc', f'buffer_store_dword v{GD}, v2, {s(SWS,4)}, 0 offen sc0 sc1']
    sig = [['v_cmp_gt_u32 vcc, 1, v0', 'v_mov_b32 v3, 0x40000000', 'v_mov_b32 v4, 1', 'v_cndmask_b32 v2, v3, v0, vcc'],
           [f'buffer_atomic_add v4, v2, {s(SDB,4)}, 0 offen sc1']]
    pre = [['s_lshl_b32 s34, s28, 15', 'v_lshlrev_b32 v2, 7, v0', f'buffer_load_dword v29, v2, {s(SWQ,4)}, s34 offen']]
    XF = 192
    ln1 = []
    for r in range(2):
        for i in range(8):
            ln1 += [f'v_lshlrev_b32 v{XF+16*r+2*i}, 16, v{XR+8*r+i}', f'v_and_b32 v{XF+16*r+2*i+1}, 0xffff0000, v{XR+8*r+i}']
    for i in range(1, 16):
        for r in range(2): ln1.append(f'v_add_f32 v{GA+r}, v{XF+16*r+i}, v{(XF+16*r) if i == 1 else GA+r}')
    ln1 += allreduce([GA, GA+1], [GA+2, GA+3])
    for r in range(2): ln1.append(f'v_mul_f32 v{GA+r}, {fl(1/1024)}, v{GA+r}')
    for i in range(16):
        for r in range(2): ln1.append(f'v_sub_f32 v{XF+16*r+i}, v{XF+16*r+i}, v{GA+r}')
    for i in range(16):
        for r in range(2): ln1.append(f'{"v_mul_f32" if i == 0 else "v_fmac_f32"} v{GA+4+r}, v{XF+16*r+i}, v{XF+16*r+i}')
    ln1 += allreduce([GA+4, GA+5], [GA+2, GA+3])
    ln1 += [f'v_mov_b32 v2, {fl(1e-5)}']
    for r in range(2): ln1.append(f'v_fmac_f32 v2, {fl(1/1024)}, v{GA+4}' if r == 0 else f'v_mov_b32 v3, {fl(1e-5)}')
    ln1 += [f'v_fmac_f32 v3, {fl(1/1024)}, v{GA+5}', 'v_rsq_f32 v2, v2', 'v_rsq_f32 v3, v3', 's_nop 0']
    for i in range(16):
        for r in range(2): ln1.append(f'v_mul_f32 v{XF+16*r+i}, v{XF+16*r+i}, v{2+r}')
    def q(l, i, n): return l[len(l)*i//n: len(l)*(i+1)//n]
    w1 = silu + fma + red
    sides = {1: {j: q(w1, j, 8) for j in range(4)}, 2: {j: q(w1, 4+j, 8) for j in range(4)},
             3: {j: q(ln1, j, 4) for j in range(4)}, 4: {0: fin, 1: fin2, 2: pre}, 5: {0: sig}}
    for sl in range(8):
        g.slab(A, sl, first=(sl == 0), loads=(sl < 6), last=(sl == 7), side=sides.get(sl))
    A(f'v_mov_b32 v2, 0\n{name}_poll:\nbuffer_load_dword v3, v2, {s(SDB,4)}, 0 offen sc1\ns_waitcnt vmcnt(0)\nv_readfirstlane_b32 s34, v3')
    A(f's_cmp_lt_u32 s34, 256\ns_cbranch_scc1 {name}_poll')
    A('v_lshlrev_b32 v2, 6, v1')
    for i in range(4):
        A(f'buffer_load_dwordx4 {v(64+4*i,4)}, v2, {s(SWS,4)}, 0 offen offset:{i*16} sc1')
    A('v_add_u32 v2, 4096, v2')
    for i in range(4):
        A(f'buffer_load_dwordx4 {v(80+4*i,4)}, v2, {s(SWS,4)}, 0 offen offset:{i*16} sc1')
    A('v_lshlrev_b32 v2, 4, v1')
    A(f's_lshl_b32 s36, s26, 19\ns_lshl_b32 s37, s27, 16\ns_add_u32 s36, s36, s37\ns_lshl_b32 s37, s3, 14\ns_add_u32 s36, s36, s37')
    k = 0
    for mt in range(2):
        for nt in range(8):
            for h in range(2):
                t = 96 + (k % 4) * 12; k += 1
                ab = (mt*8+nt)*16 + 8*h
                for i in range(8): A(f'v_accvgpr_read_b32 v{t+i}, a{ab+i}')
                for i in range(4): A(f'v_cvt_pk_bf16_f32 v{t+8+i}, v{t+2*i}, v{t+2*i+1}')
                if nt < 4: off = WS_K + mt*8192 + (2*nt+h)*1024
                else: off = WS_V + mt*8192 + h*4096 + (nt-4)*1024
                A(f's_add_u32 s37, s36, {off}\nbuffer_store_dwordx4 {v(t+8,4)}, v2, {s(SWS,4)}, s37 offen')
    A('s_waitcnt vmcnt(32)')
    for i in range(16):
        A(f'v_add_f32 v{80+i}, 1.0, v{80+i}'); bf16_round(A, 80+i, 0)
        A(f'v_mul_f32 v{80+i}, {fl(QSCALE)}, v{80+i}\nv_mul_f32 v{64+i}, {fl(QSCALE)}, v{64+i}')
    for r in range(2):
        for i in range(16): A(f'v_fma_f32 v{XF+16*r+i}, v{XF+16*r+i}, v{80+i}, v{64+i}')
        for gg in range(2):
            for i, f in enumerate((4*gg, 4*gg+2, 8+4*gg, 10+4*gg)):
                A(f'v_cvt_pk_bf16_f32 v{XR+8*r+4*gg+i}, v{XF+16*r+f}, v{XF+16*r+f+1}')
    A(f's_lshr_b32 s36, s35, 5\ns_lshl_b32 s36, s36, 16\ns_and_b32 s37, s35, 31\ns_lshl_b32 s37, s37, 4\ns_add_u32 s36, s36, s37\ns_add_u32 s36, s36, {WS_H}')
    A('v_lshlrev_b32 v2, 10, v1')
    for r in range(2):
        for gg in range(2): A(f'buffer_store_dwordx4 {v(XR+8*r+4*gg,4)}, v2, {s(SWS,4)}, s36 offen offset:{r*16+gg*512}')
    A(f'{name}_end:\ns_endpgm')
    return name, (256, 131072+4096)
```

```python
from core import *
BIG = 2.0**100
QR, SR, NM, KF, VF, PR, ET = 16, 80, 112, 144, 176, 208, 224
LA, US, VKN, VVC, VTQ, VDM, MT0 = 232, 234, 235, 236, 237, 14, 238
STHR, SFLR = 76, 78
SKV, SCT = 60, 64
def attn_kernel(A, name='attn_kernel'):
    header(A, name, 256)
    A('s_load_dwordx2 s[4:5], s[0:1], 16\ns_load_dwordx2 s[6:7], s[0:1], 40\ns_load_dwordx4 s[8:11], s[0:1], 56\ns_load_dwordx2 s[22:23], s[0:1], 104')
    A('v_and_b32 v1, 63, v0\nv_lshrrev_b32 v2, 6, v0\ns_nop 0\nv_readfirstlane_b32 s3, v2')
    A('s_and_b32 s24, s2, 7\ns_lshr_b32 s25, s2, 3')
    A('s_and_b32 s26, s25, 3\ns_lshl_b32 s27, s24, 2\ns_add_u32 s26, s26, s27')
    A('s_lshr_b32 s27, s25, 2')
    A('s_waitcnt lgkmcnt(0)')
    SWQ, SH, SWO, SW1, SW2 = 40, 44, 48, 52, 56
    srd(A, SWQ, 4, 0, 8*MB, 4096); srd(A, SH, 22, WS_H, 4*MB); srd(A, SWO, 6, 0, 8*MB); srd(A, SW1, 8, 0, 7*MB); srd(A, SW2, 10, 0, 7*MB)
    srd(A, SKV, 22, WS_K, 32*MB); srd(A, SCT, 22, WS_CTX, 16*MB)
    g = Gemm(MT=2, NT=4, G=2, KS=4, D=4, amode='fm', ldw=8192, acc=lambda mt, nt: v(QR+(mt*4+nt)*16, 16), bfr=KF, afr=('a', 128),
             vB0=6, vB1=7, vD=8, vA=[12, 13], sB=[SWQ, SWQ], sK=30, sWB=31, sA=SH, sKA=32, bbase=98304,
             trans=lambda nt: True, ncol=lambda n64: n64*128)
    g.setup_w(A, 1, 2, 3)
    A('s_lshl_b32 s30, s26, 8\ns_mov_b32 s32, 0')
    A('s_sub_u32 s28, 15, s27\ns_lshl_b32 s28, s28, 2\ns_add_u32 s28, s28, s3\ns_lshl_b32 s29, s27, 2\ns_add_u32 s29, s29, s3')
    A(f'v_lshlrev_b32 v{VDM}, 4, v1\ns_lshl_b32 s33, s28, 16\nv_add_u32 v12, s33, v{VDM}\ns_lshl_b32 s33, s29, 16\nv_add_u32 v13, s33, v{VDM}')
    for sl in range(3): A(g.issue_set(sl))
    A(g.w_dma(3), g.a_load(3, range(2)))
    for r in range(QR, QR+128): A(f'v_mov_b32 v{r}, 0')
    A('s_lshl_b32 s34, s26, 19\ns_lshl_b32 s33, s3, 12\ns_add_u32 s34, s34, s33\ns_mov_b32 s38, s33\ns_add_u32 s39, s33, 16384')
    A(f's_add_u32 s35, s34, {16*MB}\ns_lshl_b32 s33, s27, 15\ns_sub_u32 s33, {32*16384}, s33\ns_add_u32 s36, s34, s33\ns_add_u32 s37, s35, s33')
    def kvdma(which):
        so, se, sm = (34, 36, 38) if which == 'K' else (35, 37, 39)
        it = [[f's_cmp_lt_u32 s{so}, s{se}', f's_cselect_b32 s33, s{so}, 0x7f000000', f's_mov_b32 m0, s{sm}', f's_add_u32 s{so}, s{so}, 16384',
               f'buffer_load_dwordx4 v{VDM}, {s(SKV,4)}, s33 offen lds']]
        for i in range(1, 4): it.append([f'buffer_load_dwordx4 v{VDM}, {s(SKV,4)}, s33 offen offset:{i*1024} lds'])
        it[2] += [f's_add_u32 s{sm}, s{sm}, 32768']; it[3] += [f's_and_b32 s{sm}, s{sm}, 0x1ffff']
        return it
    A(f's_waitcnt vmcnt({2*12+8})\ns_barrier')
    A(g.reads(0, 0, 0))
    A(f's_mov_b32 s20, 3\n.p2align 3\n{name}_ql:')
    for sl in range(4): g.slab(A, sl)
    A(f's_sub_u32 s20, s20, 1\ns_cmp_lg_u32 s20, 0\ns_cbranch_scc1 {name}_ql')
    zo = [f'v_accvgpr_write_b32 a{i}, 0' for i in range(128)]
    zp = [f'v_mov_b32 v{PR+i}, 0' for i in range(16)] + [f'v_mov_b32 v{LA}, 0', f'v_mov_b32 v{LA+1}, 0',
          f'v_mov_b32 v{VVC}, v{VDM}', f'v_add_u32 v{VKN}, 32768, v{VDM}',
          'v_and_b32 v2, 31, v1', 's_lshl_b32 s33, s3, 5', 'v_add_u32 v2, s33, v2', 'v_lshrrev_b32 v3, 5, v1', 'v_lshlrev_b32 v3, 2, v3', 'v_sub_u32 v2, v2, v3',
          'v_cvt_f32_i32 v2, v2', 'v_add_f32 v2, 0.5, v2', f'v_mul_f32 v{VTQ}, {fl(BIG)}, v2',
          f's_mov_b32 s{STHR}, -1.0', f's_mov_b32 s{STHR+1}, -1.0', f's_mov_b32 s{SFLR}, 0xff800000', f's_mov_b32 s{SFLR+1}, 0xff800000']
    g.slab(A, 12, loads=False, side={1: kvdma('K') + kvdma('K') + kvdma('V')})
    g.slab(A, 13, loads=False, tail_loads=False, vm=12+12, side={0: zo[:64], 1: kvdma('K') + kvdma('V')})
    g.slab(A, 14, loads=False, tail_loads=False, vm=20, side={0: zo[64:], 1: zp})
    g.slab(A, 15, loads=False, tail_loads=False, last=True)
    kread = lambda r, va, sub: f'ds_read_b128 {v(KF+4*r,4)}, v{va} offset:{sub*8192 + r*1024}'
    vread = lambda r, sub: f'ds_read_b128 {v(VF+4*r,4)}, v{VVC} offset:{16384 + sub*8192 + r*1024}'
    A('s_waitcnt vmcnt(8)\ns_barrier')
    A([kread(r, VVC, 0) for r in range(8)])
    A('s_nop 7')
    for i in range(64): A(f'v_cvt_pk_bf16_f32 v{QR+i}, v{QR+2*i}, v{QR+2*i+1}')
    for i in range(32): A(f'v_mov_b32 v{NM+i}, 0')
    def qk(X, par):
        return [mfma(v(SR+16*par, 16), v(KF+4*r, 4), v(QR+32*X+4*r, 4), v(NM+16*X, 16) if r == 0 else v(SR+16*par, 16)) for r in range(8)]
    def pv(X, par):
        return [mfma(a(64*X+16*(r & 3), 16), v(VF+4*r, 4), v(PR+8*par+4*(r >> 2), 4), a(64*X+16*(r & 3), 16)) for r in range(8)]
    A('s_waitcnt lgkmcnt(0)', qk(0, 0), 's_nop 15')
    def softmax(par, mask=None):
        S = SR+16*par; e = lambda i: ET + (i & 3)
        def ex(i):
            o = []
            if mask is not None:
                c = 32*mask + (i & 3) + 8*(i >> 2)
                o += [f'v_add_f32 v{MT0}, {fl(-c*BIG)}, v{VTQ}', f'v_min_f32 v{S+i}, v{S+i}, v{MT0}']
            return o + [f'v_exp_f32 v{e(i)}, v{S+i}']
        o = ex(0) + ex(1)
        for i in range(0, 16, 2):
            if i > 0: o.append(f'v_add_f32 v{US}, v{US}, v{e(i)}')
            if i < 14: o += ex(i+2)
            o.append(f'v_add_f32 v{US}, v{US if i else e(0)}, v{e(i+1)}')
            o.append(f'v_cvt_pk_bf16_f32 v{PR+8*par+i//2}, v{e(i)}, v{e(i+1)}')
            if i < 14: o += ex(i+3)
        return o
    stubs = []
    def slot(cur, par, nxt, prv, mask=None, kr=None, vr=None, sync=False, adv=False, wk=None, wv=None, fix=False, extra=None):
        st = []
        if sync:
            A('s_waitcnt vmcnt(8)' + (f' lgkmcnt({wk})' if wk is not None else '') + '\ns_barrier')
            st.append((kvdma('K') + kvdma('V'), 0, 15))
        elif wk is not None: A(f's_waitcnt lgkmcnt({wk})')
        m1 = qk(nxt, par ^ 1) if nxt is not None else []
        m2 = pv(prv, par ^ 1); n1 = len(m1); n = n1 + 8
        if wv is not None:
            if n1: st.insert(0, ([f's_waitcnt lgkmcnt({wv})'], n1-1, n1-1))
            else: A(f's_waitcnt lgkmcnt({wv})')
        pre = []
        if kr: pre.append(([kread(r, *kr) for r in range(8)], 0, 7))
        if vr is not None: pre.append(([vread(r, vr) for r in range(8)], n1, n-1))
        sm = softmax(par, mask)
        L = f'{name}_s{len(stubs)}'
        sm += [[f'v_cmp_nge_f32 vcc, s{STHR+cur}, v{US}', f's_cbranch_vccnz {L}', f'{L}r:', f'v_add_f32 v{LA+cur}, v{LA+cur}, v{US}']]
        stubs.append(f'{L}:\ns_call_b64 s[80:81], {name}_fix{cur}{par}{int(fix)}\ns_branch {L}r')
        post = []
        if adv: post.append(([[f'v_mov_b32 v{VVC}, v{VKN}', f'v_add_u32 v{VKN}, 32768, v{VKN}', f'v_and_b32 v{VKN}, 0x1ffff, v{VKN}']], n-1, n-1))
        if extra: post.append((extra, 8, n-1))
        wvs = [x for x in st if isinstance(x[0][0], str)]; oth = [x for x in st if not isinstance(x[0][0], str)]
        A(weave(m1 + m2, pre + oth + [(sm, 0, n-1)] + post + wvs))
    def p1(mask=None, last=False, extra=None):
        slot(0, 0, 1, 1, kr=(VVC, 1), vr=0, sync=True)
        slot(1, 1, 0, 0, mask=mask, wk=8, wv=0, extra=extra)
        slot(0, 0, 1, 1, kr=(VKN, 0), vr=1)
        slot(1, 1, 0, 0, mask=None if mask is None else mask+1, wk=8, wv=(8 if last else 0), kr=(VKN, 1) if last else None, adv=True)
    def p2(last=False):
        for t in range(2):
            fin = last and t == 1
            slot(0, 0, 0, 0, mask=2*t if last else None, kr=None if fin else (VKN, 0), vr=0, sync=True, wk=8, wv=0 if fin else 8, fix=True)
            slot(0, 1, None if fin else 0, 0, mask=2*t+1 if last else None, kr=None if fin else (VKN, 1), vr=1, wk=None if fin else 8, wv=0 if fin else 8, adv=True, fix=True)
    A(f's_lshl_b32 s20, s27, 1\ns_cmp_eq_u32 s20, 0\ns_cbranch_scc1 {name}_p1e\n.p2align 3\n{name}_p1:')
    p1()
    A(f's_sub_u32 s20, s20, 1\ns_cmp_lg_u32 s20, 0\ns_cbranch_scc1 {name}_p1\n{name}_p1e:')
    pre = [['s_lshl_b32 s21, s2, 15', 'v_lshlrev_b32 v242, 7, v0', f'buffer_load_dword v239, v242, {s(SWO,4)}, s21 offen'],
           ['s_mul_i32 s21, s2, 28672', f'buffer_load_dword v240, v242, {s(SW1,4)}, s21 offen'], [f'buffer_load_dword v241, v242, {s(SW2,4)}, s21 offen']]
    p1(mask=0, extra=pre); p1(mask=2, last=True)
    A('s_nop 1', pv(1, 1))
    for i in range(8): A(f'v_mov_b32 v{PR+8+i}, 0')
    A(f's_waitcnt lgkmcnt(0)\ns_sub_u32 s20, 7, s27\ns_lshl_b32 s20, s20, 1\ns_cmp_eq_u32 s20, 0\ns_cbranch_scc1 {name}_p2e\n.p2align 3\n{name}_p2:')
    p2()
    A(f's_sub_u32 s20, s20, 1\ns_cmp_lg_u32 s20, 0\ns_cbranch_scc1 {name}_p2\n{name}_p2e:')
    p2(last=True)
    A('s_waitcnt lgkmcnt(0)', pv(0, 1))
    for X in (1, 0):
        A(f'v_mov_b32 v2, v{LA+X}\ns_nop 1\nv_permlane32_swap_b32 v{LA+X}, v2\ns_nop 1\nv_add_f32 v2, v{LA+X}, v2\nv_rcp_f32 v2, v2')
        A(f's_lshl_b32 s33, s{28+X}, 18\ns_lshl_b32 s21, s26, 13\ns_add_u32 s33, s33, s21')
        for n in range(8):
            t = SR + (n % 4) * 12
            for i in range(8): A(f'v_accvgpr_read_b32 v{t+i}, a{64*X+8*n+i}')
            for i in range(8): A(f'v_mul_f32 v{t+i}, v{t+i}, v2')
            for i in range(4): A(f'v_cvt_pk_bf16_f32 v{t+8+i}, v{t+2*i}, v{t+2*i+1}')
            if n == 4: A('s_add_u32 s33, s33, 4096')
            A(f'buffer_store_dwordx4 {v(t+8,4)}, v{VDM}, {s(SCT,4)}, s33 offen offset:{(n%4)*1024}')
    A(f'{name}_end:\ns_endpgm')
    A(stubs)
    for X, par, fix in ((0, 0, 0), (1, 1, 0), (0, 0, 1), (0, 1, 1)):
        S = SR+16*par; S2 = SR+16*(par ^ 1)
        A(f'{name}_fix{X}{par}{fix}:\ns_nop 15')
        A(f'v_max3_f32 v2, v{S}, v{S+1}, v{S+2}')
        for i in range(3, 15, 2): A(f'v_max3_f32 v2, v2, v{S+i}, v{S+i+1}')
        A(f'v_max_f32 v2, v2, v{S+15}\nv_mov_b32 v3, v2\ns_nop 1\nv_permlane32_swap_b32 v2, v3\ns_nop 1\nv_max_f32 v2, v2, v3\nv_max_f32 v2, s{SFLR+X}, v2')
        for i in range(16): A(f'v_sub_f32 v{NM+16*X+i}, v{NM+16*X+i}, v2\nv_sub_f32 v{S+i}, v{S+i}, v2')
        if fix:
            for i in range(16): A(f'v_sub_f32 v{S2+i}, v{S2+i}, v2')
        A(f's_cmp_lg_u32 s{SFLR+X}, 0\ns_cbranch_scc1 {name}_fx{X}{par}{fix}')
        A(f'v_sub_f32 v3, 0, v2\nv_exp_f32 v3, v3\ns_nop 0\nv_mul_f32 v{LA+X}, v{LA+X}, v3')
        for i in range(0, 64, 2):
            A(f'v_accvgpr_read_b32 v4, a{64*X+i}\nv_accvgpr_read_b32 v5, a{64*X+i+1}\nv_mul_f32 v4, v4, v3\nv_mul_f32 v5, v5, v3')
            A(f'v_accvgpr_write_b32 a{64*X+i}, v4\nv_accvgpr_write_b32 a{64*X+i+1}, v5')
        A(f'{name}_fx{X}{par}{fix}:', softmax(par))
        A(f's_mov_b32 s{STHR+X}, {fl(4096.0)}\ns_mov_b32 s{SFLR+X}, 0\ns_setpc_b64 s[80:81]')
    return name, (256, 163840)
```

```python
from core import *
def halfsum(A, r, t):
    A(f'v_mov_b32 v{t}, v{r}\ns_nop 1\nv_permlane32_swap_b32 v{r}, v{t}\ns_nop 1\nv_add_f32 v{r}, v{r}, v{t}')

def run_gemm(A, g, name, nslab, nextra=0, hook=None):
    D, n = g.D, g.nvm()
    A(f's_waitcnt vmcnt({(D-1)*n - g.G*g.MT}) lgkmcnt(0)\ns_barrier')
    A(g.reads(0, 0, 0))
    if hook: A(hook(0, -1))
    A(f's_mov_b32 s20, {nslab//D - 1}\n.p2align 3\n{name}_l:')
    for sl in range(D): g.slab(A, sl, side=hook and {ss: hook(sl, ss) for ss in range(g.KS//g.G)})
    A(f's_sub_u32 s20, s20, 1\ns_cmp_lg_u32 s20, 0\ns_cbranch_scc1 {name}_l')
    for sl in range(D):
        g.slab(A, sl, loads=False, tail_loads=(sl == 0), vm=max(0, D-2-sl)*n, last=(sl == D-1),
               side=hook and {ss: hook(sl, ss, sl == D-1) for ss in range(g.KS//g.G)})

def thin_kernel(A, name, which):
    o = which == 'o'
    K = 4096 if o else 3584
    header(A, name, 256)
    A(f's_load_dwordx2 s[4:5], s[0:1], {KA["wo"] if o else KA["w2"]}\ns_load_dwordx2 s[6:7], s[0:1], {KA["x"] if o else KA["out"]}\ns_load_dwordx2 s[22:23], s[0:1], 104')
    A('v_and_b32 v1, 63, v0\nv_lshrrev_b32 v2, 6, v0\ns_nop 0\nv_readfirstlane_b32 s3, v2')
    A('s_and_b32 s24, s2, 7\ns_lshr_b32 s25, s2, 3')
    A('s_and_b32 s26, s24, 3\ns_lshl_b32 s26, s26, 2\ns_and_b32 s27, s25, 3\ns_add_u32 s26, s26, s27')
    A('s_lshr_b32 s27, s24, 2\ns_lshl_b32 s27, s27, 3\ns_lshr_b32 s28, s25, 2\ns_add_u32 s27, s27, s28')
    A('s_lshl_b32 s28, s26, 2\ns_add_u32 s28, s28, s3')
    A('s_waitcnt lgkmcnt(0)')
    SW, SA, SX, SWS = 40, 44, 48, 52
    srd(A, SW, 4, 0, K*2048, 4096); srd(A, SA, 22, WS_CTX if o else WS_FF, K*4096); srd(A, SX, 6, 0, 4*MB); srd(A, SWS, 22, 0, 72*MB)
    AC, WF, XR, C1, C2 = 16, 48, 112, 128, 160
    g = Gemm(MT=1, NT=2, G=4, KS=8, D=4, amode='fm', ldw=2048, acc=lambda mt, nt: v(AC+nt*16, 16), bfr=WF, afr=('a', 0),
             vB0=6, vB1=7, vD=8, vA=[12], sB=[SW], sK=30, sWB=31, sA=SA, sKA=32, bbase=0, trans=lambda nt: True, ncol=lambda n64: 0)
    g.setup_w(A, 1, 2, 3)
    A(f's_lshl_b32 s30, s27, 7\ns_mul_i32 s32, s28, {K*64}\nv_lshlrev_b32 v12, 4, v1')
    A('v_lshrrev_b32 v13, 5, v1\nv_and_b32 v14, 31, v1')
    A('v_lshlrev_b32 v2, 4, v13\ns_lshl_b32 s33, s27, 8')
    for i in range(8):
        A(f's_add_u32 s34, s33, {(2048 if o else 5120)*4}\nbuffer_load_dwordx4 {v(C1+4*i,4)}, v2, {s(SWS,4)}, s34 offen offset:{i*32}')
    A(f's_lshl_b32 s35, s26, 4\ns_add_u32 s35, s35, s27\ns_lshl_b32 s35, s35, 2\ns_add_u32 s35, s35, s3\ns_lshl_b32 s35, s35, 12\ns_add_u32 s35, s35, {WS_X1}')
    A(f's_lshl_b32 s36, s28, 16\ns_lshl_b32 s37, s27, 7\ns_add_u32 s36, s36, s37')
    if o:
        for i in range(8): A(f's_add_u32 s34, s33, {4096*4}\nbuffer_load_dwordx4 {v(C2+4*i,4)}, v2, {s(SWS,4)}, s34 offen offset:{i*32}')
        A('v_lshlrev_b32 v3, 11, v14\nv_lshl_add_u32 v3, v13, 3, v3')
        for i in range(8): A(f'buffer_load_dwordx2 {v(XR+2*i,2)}, v3, {s(SX,4)}, s36 offen offset:{i*16}')
    else:
        for i in range(4): A(f'buffer_load_dwordx4 {v(XR+4*i,4)}, v12, {s(SWS,4)}, s35 offen offset:{i*1024}')
    for sl in range(3): A(g.issue_set(sl))
    A(g.w_dma(3), g.a_load(3, range(4)))
    for r in range(32): A(f'v_mov_b32 v{AC+r}, 0')
    run_gemm(A, g, name, K//128)
    XF = WF
    for i in range(16): A(f'v_lshlrev_b32 v{XF+2*i}, 16, v{XR+i}\nv_and_b32 v{XF+2*i+1}, 0xffff0000, v{XR+i}')
    for i in range(32): A(f'v_fmac_f32 v{XF+i}, v{AC+i}, v{C1+i}')
    for i in range(16): A(f'v_cvt_pk_bf16_f32 v{XR+i}, v{XF+2*i}, v{XF+2*i+1}')
    if o:
        for i in range(4): A(f'buffer_store_dwordx4 {v(XR+4*i,4)}, v12, {s(SWS,4)}, s35 offen offset:{i*1024}')
        for i in range(16): A(f'v_lshlrev_b32 v{XF+2*i}, 16, v{XR+i}\nv_and_b32 v{XF+2*i+1}, 0xffff0000, v{XR+i}')
        for i in range(32):
            A(f'v_add_f32 v{C2+i}, 1.0, v{C2+i}\nv_cvt_pk_bf16_f32 v{C2+i}, v{C2+i}, v{C2+i}\nv_and_b32 v{C2+i}, 0xffff0000, v{C2+i}\nv_mul_f32 v{C2+i}, v{C2+i}, v{XF+i}')
        for i in range(16): A(f'v_cvt_pk_bf16_f32 v{AC+i}, v{C2+2*i}, v{C2+2*i+1}')
        A(f's_lshl_b32 s36, s28, 16\ns_lshl_b32 s37, s27, 12\ns_add_u32 s36, s36, s37\ns_add_u32 s36, s36, {WS_X1G}')
        for i in range(4): A(f'buffer_store_dwordx4 {v(AC+4*i,4)}, v12, {s(SWS,4)}, s36 offen offset:{i*1024}')
        A(f'v_add_f32 v2, v{XF}, v{XF+1}')
        for i in range(2, 32): A(f'v_add_f32 v2, v2, v{XF+i}')
        halfsum(A, 2, 4)
        A(f'v_mul_f32 v2, {fl(1/64)}, v2')
        for i in range(32): A(f'v_sub_f32 v{XF+i}, v{XF+i}, v2\n{"v_mul_f32" if i == 0 else "v_fmac_f32"} v3, v{XF+i}, v{XF+i}')
        halfsum(A, 3, 4)
        A(f's_lshl_b32 s36, s28, 12\ns_lshl_b32 s37, s27, 3\ns_add_u32 s36, s36, s37\ns_add_u32 s36, s36, {WS_ST}\nv_lshlrev_b32 v4, 7, v14')
        A(f'buffer_store_dwordx2 v[2:3], v4, {s(SWS,4)}, s36 offen')
    else:
        A('v_lshlrev_b32 v3, 11, v14\nv_lshl_add_u32 v3, v13, 4, v3')
        for m in range(4):
            A(f'v_permlane32_swap_b32 v{XR+4*m}, v{XR+4*m+2}\nv_permlane32_swap_b32 v{XR+4*m+1}, v{XR+4*m+3}')
        for m in range(4): A(f'buffer_store_dwordx4 {v(XR+4*m,4)}, v3, {s(SX,4)}, s36 offen offset:{m*32}')
    A(f'{name}_end:\ns_endpgm')
    return name, (256, 65536), 384

def ffn1_kernel(A, name='ffn1_kernel'):
    header(A, name, 224)
    A(f's_load_dwordx2 s[4:5], s[0:1], {KA["w1"]}\ns_load_dwordx2 s[22:23], s[0:1], 104')
    A('v_and_b32 v1, 63, v0\nv_lshrrev_b32 v2, 6, v0\ns_nop 0\nv_readfirstlane_b32 s3, v2')
    A('s_and_b32 s24, s2, 7\ns_lshr_b32 s25, s2, 3')
    A('s_and_b32 s26, s24, 1\ns_lshl_b32 s26, s26, 2\ns_and_b32 s27, s25, 3\ns_add_u32 s26, s26, s27')
    A('s_lshr_b32 s27, s24, 1\ns_mul_i32 s27, s27, 7\ns_lshr_b32 s28, s25, 2\ns_add_u32 s27, s27, s28')
    A('s_lshl_b32 s28, s26, 3\ns_lshl_b32 s29, s3, 1\ns_add_u32 s28, s28, s29')
    A('s_waitcnt lgkmcnt(0)')
    SW, SA, SWS, SF = 40, 44, 48, 52
    srd(A, SW, 4, 0, 7*MB, 4096); srd(A, SA, 22, WS_X1G, 4*MB); srd(A, SWS, 22, 0, 72*MB); srd(A, SF, 22, WS_FF, 14*MB)
    AC, WF, AE, EF, WE, VE, VBE, RS = 16, 144, 208, 224, 232, 14, 15, 248
    EB, UB = 65536, 65536+4096
    g = Gemm(MT=2, NT=4, G=2, KS=4, D=4, amode='fm', ldw=7168, acc=lambda mt, nt: v(AC+(mt*4+nt)*16, 16), bfr=WF, afr=('a', 0),
             vB0=6, vB1=7, vD=8, vA=[12, 13], sB=[SW, SW], sK=30, sWB=31, sA=SA, sKA=32, bbase=0, trans=lambda nt: True, ncol=lambda n64: n64*128)
    g.setup_w(A, 1, 2, 3)
    A('s_lshl_b32 s30, s27, 8\ns_lshl_b32 s32, s28, 16\nv_lshlrev_b32 v12, 4, v1\nv_add_u32 v13, 65536, v12')
    A('v_bfe_u32 v2, v0, 1, 6\nv_lshlrev_b32 v2, 6, v2\nv_and_b32 v3, 1, v0\nv_lshl_add_u32 v2, v3, 4, v2\nv_lshrrev_b32 v3, 7, v0\nv_lshlrev_b32 v3, 12, v3\nv_sub_u32 v2, v2, v3')
    A(f'v_add_u32 v2, {4096*4}, v2\nbuffer_load_dwordx4 v[16:19], v2, {s(SWS,4)}, 0 offen\nbuffer_load_dwordx4 v[20:23], v2, {s(SWS,4)}, 0 offen offset:32')
    A(f'v_and_b32 v2, 31, v1\nv_lshlrev_b32 v2, 7, v2\nv_lshrrev_b32 v3, 5, v1\nv_lshl_add_u32 v2, v3, 6, v2\ns_lshl_b32 s33, s28, 12\ns_add_u32 s33, s33, {WS_ST}')
    for mt in range(2):
        for i in range(4): A(f'buffer_load_dwordx4 {v(32+16*mt+4*i,4)}, v2, {s(SWS,4)}, s33 offen offset:{i*16}')
        A('s_add_u32 s33, s33, 4096')
    for sl in range(3): A(g.issue_set(sl))
    A(g.w_dma(3), g.a_load(3, range(2)))
    A(f's_waitcnt vmcnt({3*12+8})')
    A('v_cmp_gt_u32 vcc, 128, v0\nv_mov_b32 v3, 0\nv_mov_b32 v4, 1.0\nv_cndmask_b32 v3, v3, v4, vcc')
    for i in range(8): A(f'v_add_f32 v{16+i}, v{16+i}, v3')
    for i in range(4): A(f'v_cvt_pk_bf16_f32 v{24+i}, v{16+2*i}, v{17+2*i}')
    A(f'v_lshlrev_b32 v2, 4, v0\nv_add_u32 v2, {EB}, v2\nds_write_b128 v2, v[24:27]')
    for mt in range(2):
        b = 32+16*mt
        A(f'v_add_f32 v2, v{b}, v{b+2}')
        for i in range(2, 8): A(f'v_add_f32 v2, v2, v{b+2*i}')
        halfsum(A, 2, 4)
        A(f'v_mul_f32 v2, {fl(1/16)}, v2')
        for i in range(8): A(f'v_sub_f32 v{b+2*i}, v{b+2*i}, v2')
        A(f'v_mul_f32 v3, v{b}, v{b}')
        for i in range(1, 8): A(f'v_fmac_f32 v3, v{b+2*i}, v{b+2*i}')
        A(f'v_mul_f32 v3, {fl(64.0)}, v3')
        for i in range(8): A(f'v_add_f32 v3, v3, v{b+2*i+1}')
        halfsum(A, 3, 4)
        A(f'v_mov_b32 v4, {fl(1e-5)}\nv_fmac_f32 v4, {fl(1/1024)}, v3\nv_rsq_f32 v4, v4\ns_nop 0')
        A(f'v_mov_b32 v{RS+2*mt}, v4\nv_mov_b32 v{RS+2*mt+1}, v4\nv_mul_f32 v4, v4, v2\nv_sub_f32 v{RS+4+2*mt}, 0, v4\nv_sub_f32 v{RS+5+2*mt}, 0, v4')
    A(f'v_and_b32 v2, 1, v1\nv_lshlrev_b32 v2, 11, v2\nv_lshrrev_b32 v3, 5, v1\nv_lshl_add_u32 v2, v3, 4, v2\nv_add_u32 v{VE}, {EB}, v2')
    A(f's_and_b32 s33, s3, 1\ns_lshl_b32 s33, s33, 6\nv_xor_b32 v{VBE}, s33, v6\ns_lshr_b32 s33, s3, 1\ns_lshl_b32 s33, s33, 10\nv_add_u32 v{VBE}, s33, v{VBE}')
    for r in range(128): A(f'v_mov_b32 v{AC+r}, 0')
    for r in range(16): A(f'v_mov_b32 v{AE+r}, 0')
    def hook(sl, ss, last=False):
        o = []
        if ss >= 0:
            o += [mfma(v(AE, 16), v(WE+4*jj, 4), v(EF+4*jj, 4), v(AE, 16)) for jj in range(2)]
        nsl, nss = (sl, ss+1) if ss < 1 else ((sl+1) % 4, 0)
        if last and ss == 1: return o
        if ss == 1 and sl == 3: o.append(f'v_add_u32 v{VE}, 512, v{VE}')
        for jj in range(2):
            j = nss*2 + jj
            o.append(f'ds_read_b128 {v(EF+4*jj,4)}, v{VE} offset:{(nsl*4+j)*32}')
            for rd in range(2): o.append(f'ds_read_b64_tr_b16 {v(WE+4*jj+2*rd,2)}, v{VBE} offset:{nsl*16384 + (2*j+rd)*2048}')
        return o
    run_gemm(A, g, name, 16, hook=hook)
    A(f'v_and_b32 v2, 1, v1\nv_lshlrev_b32 v2, 9, v2\nv_lshrrev_b32 v3, 5, v1\nv_lshlrev_b32 v3, 6, v3\ns_lshl_b32 s33, s3, 7\nv_add3_u32 v2, v2, v3, s33\nv_add_u32 v2, {UB}, v2\nv_add_u32 v3, {UB}, v3')
    A('s_nop 7')
    for i in range(4): A(f'ds_write_b128 v2, {v(AE+4*i,4)} offset:{i*16}')
    A('s_waitcnt lgkmcnt(0)\ns_barrier')
    UT = WF
    for nt in range(2):
        for vec in range(2):
            for i in range(4): A(f'ds_read_b128 {v(UT+32*nt+16*vec+4*i,4)}, v3 offset:{vec*512+nt*128+i*16}')
    A(f's_mul_i32 s33, s28, {224*1024}\ns_lshl_b32 s34, s27, 13\ns_add_u32 s33, s33, s34\ns_add_u32 s34, s33, {224*1024}')
    for nt in range(4):
        u = UT+32*(nt & 1)
        A(f's_waitcnt lgkmcnt({8 if nt < 3 else 0})')
        for mt in range(2):
            ac = AC+(mt*4+nt)*16
            for i in range(0, 16, 2):
                A(f'v_pk_fma_f32 {v(AE+i,2)}, {v(u+i,2)}, {v(RS+4+2*mt,2)}, {v(u+16+i,2)}')
            for i in range(0, 16, 2):
                A(f'v_pk_fma_f32 {v(ac+i,2)}, {v(ac+i,2)}, {v(RS+2*mt,2)}, {v(AE+i,2)}')
            for i in range(8): A(f'v_cvt_pk_bf16_f32 v{ac+i}, v{ac+2*i}, v{ac+2*i+1}')
            for i in range(8): A(f'v_pk_max_i16 v{ac+i}, v{ac+i}, 0')
            if nt == 2 and mt == 0: A('s_add_u32 s33, s33, 4096\ns_add_u32 s34, s34, 4096')
            for h in range(2): A(f'buffer_store_dwordx4 {v(ac+4*h,4)}, v12, {s(SF,4)}, s{33+mt} offen offset:{((2*nt+h) % 4)*1024}')
        if nt < 2:
            for vec in range(2):
                for i in range(4): A(f'ds_read_b128 {v(u+16*vec+4*i,4)}, v3 offset:{vec*512+(nt+2)*128+i*16}')
    A(f'{name}_end:\ns_endpgm')
    return name, (224, 65536+4096+1024), 384
```

```python
import sys
from core import *
import k1, k2, k3
NAME = 'adaLN_cond__compressed_kv_cla__dense_activation_relu__prompt'
def build(path):
    A = Asm()
    ks = [k1.kv_kernel(A), k2.attn_kernel(A), k3.thin_kernel(A, 'oproj_kernel', 'o'), k3.ffn1_kernel(A), k3.thin_kernel(A, 'ffn2_kernel', 'f')]
    ref = open(f'cdna_kernels/{NAME}.s.ref').read().split('\n')
    head = [l for l in ref if l.startswith(';') and '@launch' not in l and 'Override' not in l and 'grid=ceil' not in l]
    for k in ks: head.append(f'; @launch kernel={k[0]} grid=({k[1][0]},1,1) block=(256,1,1) lds={k[1][1]}')
    t = '\n'.join(head) + '\n.amdgcn_target "amdgcn-amd-amdhsa--gfx950"\n.text\n' + A.text()
    t += '.section .rodata,"a"\n'
    for k in ks: t += '.p2align 6\n' + kd(k[0], k[2] if len(k) > 2 else 512)
    open(path, 'w').write(t)
if __name__ == '__main__':
    build(sys.argv[1] if len(sys.argv) > 1 else f'cdna_kernels/{NAME}.s')
```

```python
import struct, re, os
NT = ' nt' if os.environ.get('NT', '1') == '1' else ''
def f2u(x): return struct.unpack('<I', struct.pack('<f', x))[0]
def fl(x): return '0x%08x' % f2u(x)

MB = 1 << 20
WS_FLG = 512*1024
WS_PART = 64*1024
F_H, F_KV, F_C, F_X, F_F, F_M = 0, 1024, 2048, 4096, 5120, 6144
WS_MOD, WS_H, WS_K, WS_V, WS_CTX, WS_X1, WS_X1G, WS_ST, WS_FF = 0, 1*MB, 8*MB, 24*MB, 40*MB, 56*MB, 60*MB, 64*MB, 72*MB
KA = dict(x=0, ckv=8, wq=16, wuk=24, wuv=32, wo=40, w1=56, w2=64, c=72, wmod=80, out=88, dbg=96, ws=104)

def R(p, b, n=1):
    return f'{p}{b}' if n == 1 else f'{p}[{b}:{b+n-1}]'
def v(b, n=1): return R('v', b, n)
def a(b, n=1): return R('a', b, n)
def s(b, n=1): return R('s', b, n)

class Asm:
    def __init__(self): self.L = []
    def __call__(self, *xs):
        for x in xs:
            if isinstance(x, (list, tuple)): self(*x)
            else: self.L.extend(t.strip() for t in x.split('\n') if t.strip())
    diag = False; sv = 255
    def stamp(self, n):
        if self.diag: self(f's_memrealtime s[98:99]\ns_memtime s[100:101]\ns_waitcnt lgkmcnt(0)\nv_writelane_b32 v{self.sv}, s98, {n}\nv_writelane_b32 v{self.sv}, s100, {n+32}')
    def lstamp(self, top):
        if self.diag: self(f's_memrealtime s[98:99]\ns_memtime s[100:101]\ns_sub_u32 m0, {top}, s20\ns_waitcnt lgkmcnt(0)\nv_writelane_b32 v{self.sv}, s98, m0\ns_add_u32 m0, m0, 32\ns_nop 0\nv_writelane_b32 v{self.sv}, s100, m0')
    def dump(self, kid, n):
        if not self.diag: return
        self('s_waitcnt vmcnt(0)'); self.stamp(n)
        self(f's_getreg_b32 s98, hwreg(HW_REG_HW_ID)\ns_getreg_b32 s99, hwreg(HW_REG_XCC_ID)\ns_lshl_b32 s99, s99, 24\ns_and_b32 s98, s98, 0xffffff\ns_or_b32 s98, s98, s99\nv_writelane_b32 v{self.sv}, s98, 32')
        self(f's_add_u32 s40, s22, {96*MB}\ns_addc_u32 s41, s23, 0\ns_and_b32 s41, s41, 0xffff\ns_mov_b32 s42, {4*MB}\ns_mov_b32 s43, 0x20000')
        self(f's_lshl_b32 s44, s2, 10\ns_lshl_b32 s45, s3, 8\ns_add_u32 s44, s44, s45\ns_add_u32 s44, s44, {kid*262144}\nv_and_b32 v2, 63, v0\nv_lshlrev_b32 v2, 2, v2')
        self(f'buffer_store_dword v{self.sv}, v2, s[40:43], s44 offen')
    def mark(self, n): self.L.append(f';@mark {n}')
    def resolve(self):
        cnt = {}; out = []
        for l in self.L:
            if l.startswith(';@mark '): cnt[l[7:]] = 0; continue
            if l == ';@uncount':
                for k in cnt: cnt[k] -= 1
                continue
            if l.startswith('buffer_'):
                for k in cnt: cnt[k] += 1
            m = re.search(r'@(\w+)@', l)
            if m:
                assert cnt[m.group(1)] < 64, (l, cnt[m.group(1)])
                l = l.replace(m.group(0), str(cnt[m.group(1)]))
            out.append(l)
        self.L = out
    def text(self):
        self.resolve()
        return '\n'.join(('' if l.endswith(':') or l.startswith('.') else '  ') + l for l in self.L) + '\n'

def weave(mf, streams):
    n = len(mf); gaps = [[] for _ in range(n)]
    for items, g0, g1 in streams:
        k = len(items); g1 = min(g1, n-1); w = g1 - g0 + 1
        for i, it in enumerate(items):
            gaps[g0 + (i * w) // k].append(it)
    out = []
    for m, g in zip(mf, gaps):
        out.append(m); out.extend(g)
    return out

def srd(A, d, ptr, off, size, back=0):
    o = off - back
    if o >= 0:
        A(f's_add_u32 s{d}, s{ptr}, {o}\ns_addc_u32 s{d+1}, s{ptr+1}, 0')
    else:
        A(f's_sub_u32 s{d}, s{ptr}, {-o}\ns_subb_u32 s{d+1}, s{ptr+1}, 0')
    A(f's_and_b32 s{d+1}, s{d+1}, 0xffff\ns_mov_b32 s{d+2}, {size+back}\ns_mov_b32 s{d+3}, 0x20000')

def header(A, name, nwg):
    A(f'.globl {name}\n.p2align 8\n.type {name},@function\n{name}:')
    A(f's_cmp_ge_u32 s2, {nwg}\ns_cbranch_scc1 {name}_end')
    if A.diag: A(f'v_mov_b32 v{A.sv}, 0')
    A.stamp(0)

def kd(name, nv=512, acc=256):
    return f'''.amdhsa_kernel {name}
  .amdhsa_next_free_vgpr {nv}
  .amdhsa_next_free_sgpr 102
  .amdhsa_accum_offset {acc}
  .amdhsa_group_segment_fixed_size 0
  .amdhsa_kernarg_size 112
  .amdhsa_user_sgpr_count 2
  .amdhsa_user_sgpr_kernarg_segment_ptr 1
  .amdhsa_system_sgpr_workgroup_id_x 1
.end_amdhsa_kernel
'''

def mfma(d, x, y, c):
    return f'v_mfma_f32_32x32x16_bf16 {d}, {x}, {y}, {c}'

class Gemm:
    def __init__(g, **k): g.__dict__.update(k)
    wnt = ''
    def ppw(g): return g.KS * g.NT // 4
    def stage_bytes(g): return g.KS * g.NT * 1024
    def setup_w(g, A, vl, vt, sw, colbytes_sgpr=None):
        NH = g.NT // 2
        A(f'v_bfe_u32 v{vt}, v{vl}, 2, 2')
        A(f'v_lshlrev_b32 v{g.vB0}, 7, v{vt}')
        A(f'v_bfe_u32 v{vt}, v{vl}, 3, 1\nv_lshl_add_u32 v{g.vB0}, v{vt}, 6, v{g.vB0}')
        A(f'v_bfe_u32 v{vt}, v{vl}, 4, 1\nv_lshl_add_u32 v{g.vB0}, v{vt}, 5, v{g.vB0}')
        A(f'v_and_b32 v{vt}, 3, v{vl}\nv_lshl_add_u32 v{g.vB0}, v{vt}, 3, v{g.vB0}')
        A(f'v_lshrrev_b32 v{vt}, 5, v{vl}')
        A(f'v_mul_u32_u24 v{vt}, {512 if g.amode=="fm" else NH*1024}, v{vt}\nv_add_u32 v{g.vB0}, v{g.vB0}, v{vt}')
        if g.bbase: A(f'v_add_u32 v{g.vB0}, {g.bbase}, v{g.vB0}')
        A(f'v_xor_b32 v{g.vB1}, 64, v{g.vB0}')
        A(f'v_lshrrev_b32 v{vt}, 3, v{vl}\nv_mul_u32_u24 v{vt}, {g.ldw}, v{vt}')
        A(f'v_bfe_u32 v{vt+1}, v{vl}, 4, 1\nv_lshlrev_b32 v{vt+1}, 2, v{vt+1}\nv_and_b32 v{vt+2}, 7, v{vl}\nv_xor_b32 v{vt+1}, v{vt+1}, v{vt+2}')
        A(f'v_lshl_add_u32 v{vt}, v{vt+1}, 4, v{vt}')
        P = g.ppw()
        rows_per_wave = (P // NH) * 8
        A(f's_mul_i32 s{g.sWB}, s{sw}, {rows_per_wave*g.ldw}\nv_add_u32 v{vt}, s{g.sWB}, v{vt}')
        for i in range(P):
            kr, n64 = i // NH, i % NH
            A(f'v_add_u32 v{g.vD+i}, {4096 + kr*8*g.ldw + g.ncol(n64) - (i%4)*1024}, v{vt}')
        A(f's_mul_i32 s{g.sWB}, s{sw}, {P*1024}\ns_add_u32 s{g.sWB}, s{g.sWB}, {g.bbase}')
    def w_dma(g, st):
        NH = g.NT // 2; out = []
        for i in range(g.ppw()):
            it = []
            if i % 4 == 0: it += [f's_add_u32 m0, s{g.sWB}, {st*g.stage_bytes() + (i//4)*4096}', 's_nop 0']
            it.append(f'buffer_load_dwordx4 v{g.vD+i}, {s(g.sB[i%NH],4)}, s{g.sK} offen offset:{(i%4)*1024}{g.wnt} lds')
            out.append(it)
        out.append([f's_add_u32 s{g.sK}, s{g.sK}, {g.KS*16*g.ldw}'])
        return out
    def afrag(g, slot, j, mt):
        p, b = g.afr
        if g.amode == 'fm': return R(p, b + ((slot * g.KS + j) * g.MT + mt) * 4, 4)
        return R(p, b + (slot * g.MT + mt) * 4, 4)
    def a_load(g, slot, js):
        out = []
        for j in js:
            for mt in range(g.MT):
                it = []
                if j % 4 == 0 and j > 0 and mt == 0: it.append(f's_add_u32 s{g.sKA}, s{g.sKA}, 4096')
                it.append(f'buffer_load_dwordx4 {g.afrag(slot,j,mt)}, v{g.vA[mt]}, {s(g.sA,4)}, s{g.sKA} offen offset:{(j%4)*1024} sc1')
                if j == g.KS-1 and mt == g.MT-1: it.append(f's_add_u32 s{g.sKA}, s{g.sKA}, 4096')
                out.append(it)
        return out
    def a_dma(g, st):
        out = []
        for i in range(8):
            it = []
            if i % 4 == 0: it += [f's_add_u32 m0, s{g.sWA}, {st*32768 + (i//4)*4096}', 's_nop 0']
            it.append(f'buffer_load_dwordx4 v{g.vAD+i}, {s(g.sA,4)}, s{g.sKA} offen offset:{(i%4)*1024} lds')
            out.append(it)
        out.append([f's_add_u32 s{g.sKA}, s{g.sKA}, 128'])
        return out
    def nvm(g):
        return g.ppw() + (g.KS * g.MT if g.amode == 'fm' else 8)
    def wfrag(g, par, jj, nt): return g.bfr + ((par * g.G + jj) * g.NT + nt) * 4
    def reads(g, st, ss, par):
        NH = g.NT // 2; out = []
        for jj in range(g.G):
            j = ss * g.G + jj
            if g.amode == 'lds':
                for mt in range(g.MT):
                    out.append(f'ds_read_b128 {g.afrag(par,0,mt)}, v{g.vAR+j} offset:{st*32768 + mt*4096}')
            for nt in range(g.NT):
                r = g.wfrag(par, jj, nt); va = g.vB1 if nt & 1 else g.vB0
                for rd in range(2):
                    if g.amode == 'fm': o = (2*j + rd) * NH * 1024
                    else: o = 2*j * NH * 1024 + rd * 512
                    o += st * g.stage_bytes() + (nt >> 1) * 1024
                    assert o < 65536
                    out.append(f'ds_read_b64_tr_b16 {v(r+2*rd,2)}, v{va} offset:{o}')
        return out
    def mfmas(g, slot, ss, par, zero=False):
        out = []
        for jj in range(g.G):
            j = ss * g.G + jj
            for nt in range(g.NT):
                for mt in range(g.MT):
                    x = g.afrag(slot, j, mt) if g.amode == 'fm' else g.afrag(par, 0, mt)
                    w = v(g.wfrag(par, jj, nt), 4); d = g.acc(mt, nt)
                    c = '0' if (zero and jj == 0) else d
                    out.append(mfma(d, w, x, c) if g.trans(nt) else mfma(d, x, w, c))
        return out
    def issue_set(g, slot):
        return (g.a_load(slot, range(g.KS)) if g.amode == 'fm' else g.a_dma(slot)) + g.w_dma(slot)
    def slab(g, A, sl, first=False, loads=True, tail_loads=True, last=False, vm=None, side=None, tag='set', post=None, zero=False):
        D = g.D; st = sl % D; NS = g.KS // g.G; n = g.G * g.NT * g.MT
        side = side or {}
        for ss in range(NS):
            par = (sl * NS + ss) & 1
            lastss = ss == NS - 1
            streams = []
            if lastss and not last:
                A(f's_waitcnt vmcnt({(D-2)*g.nvm() if vm is None else vm}) lgkmcnt(0)\ns_barrier')
                if post: A(post)
                streams.append((g.reads((sl+1) % D, 0, par ^ 1), 0, max(0, n*3//4-1)))
                if loads:
                    if g.amode == 'fm':
                        streams.append((g.w_dma(st) + g.a_load(st, range(g.KS - g.G)), 0, n-1))
                    else:
                        streams.append((g.w_dma(st) + g.a_dma(st) + [f';@mark {tag}{sl+D}'], 0, n-1))
            else:
                A('s_waitcnt lgkmcnt(0)')
                if not lastss: streams.append((g.reads(st, ss+1, par ^ 1), 0, max(0, n*3//4-1)))
            if ss == 0 and tail_loads and g.amode == 'fm' and not first:
                streams.append((g.a_load((sl-1) % D, range(g.KS - g.G, g.KS)) + [f';@mark {tag}{sl-1+D}'], 0, n//2))
            if ss in side: streams.append((side[ss], 0, n-1))
            A(weave(g.mfmas(st, ss, par, zero=((first or zero) and ss == 0)), streams))

SWS, SX = 68, 60
OOB = 0x7f000000
STUBS = []
SPIN = 400000
def poll_load(vd, va, sr=SWS): return f'buffer_load_dword v{vd}, v{va}, {s(sr,4)}, 0 offen sc1'
def poll_check(name, vd, va, exp, sr=SWS):
    STUBS.append(f'{name}_sp:\n{poll_load(vd, va, sr)}\ns_waitcnt vmcnt(0)\nv_cmp_ne_u32 vcc, {exp}, v{vd}\ns_add_u32 s97, s97, 1\ns_cmp_gt_u32 s97, {SPIN}\ns_cbranch_scc1 {name}_ok\ns_cbranch_vccnz {name}_sp\ns_branch {name}_ok')
    return [f'v_cmp_ne_u32 vcc, {exp}, v{vd}', f's_cbranch_vccnz {name}_sp', f'{name}_ok:']
def flag_store(soff, t, op='dword', sr=SWS, who='v0'):
    return [f'v_cmp_eq_u32 vcc, 0, {who}', f'v_mov_b32 v{t}, {OOB}', f'v_mov_b32 v{t+1}, 1', f'v_cndmask_b32 v{t}, v{t}, {who}, vcc',
            f'buffer_store_{op} v{t+1}, v{t}, {s(sr,4)}, s{soff} offen sc0 sc1']
def q(l, i, n): return l[len(l)*i//n: len(l)*(i+1)//n]

LOG2E = 1.4426950408889634
def silu(c):
    return [f'v_lshlrev_b32 v{c}, 16, v{c}', f'v_mul_f32 v2, {fl(-LOG2E)}, v{c}', 'v_exp_f32 v2, v2', 's_nop 0', 'v_add_f32 v2, 1.0, v2',
            'v_rcp_f32 v2, v2', 's_nop 0', f'v_mul_f32 v{c}, v{c}, v2', f'v_cvt_pk_bf16_f32 v{c}, v{c}, v{c}', f'v_and_b32 v{c}, 0xffff0000, v{c}']
def gemv(LPR, J, GD, GC, GA, lds):
    o = []
    for j in range(J):
        o += silu(GC+j)
        for i in range(4):
            d = GD + 4*j + i; op = 'v_mul_f32' if j == 0 else 'v_fmac_f32'
            o += [f'v_lshlrev_b32 v2, 16, v{d}', f'v_and_b32 v3, 0xffff0000, v{d}', f'{op} v{GA+2*i}, v2, v{GC+j}', f'{op} v{GA+2*i+1}, v3, v{GC+j}']
    sh = LPR
    while sh < 16: o += [f'v_add_f32_dpp v{GA+i}, v{GA+i}, v{GA+i} row_ror:{sh} row_mask:0xf bank_mask:0xf' for i in range(8)]; sh *= 2
    o += ['v_lshrrev_b32 v2, 4, v0', f'v_and_b32 v3, {LPR-1}, v0', f'v_mul_u32_u24 v2, {32*LPR}, v2', 'v_lshl_add_u32 v2, v3, 5, v2', f'v_add_u32 v2, {lds}, v2']
    return o + [f'ds_write_b128 v2, {v(GA,4)}', f'ds_write_b128 v2, {v(GA+4,4)} offset:16']
def fin(N, GD, lds): return ['v_lshlrev_b32 v2, 2, v1', f'v_add_u32 v2, {lds}, v2'] + [f'ds_read_b32 v{GD+i}, v2 offset:{i*4*N}' for i in range(16)]
def fin2(N, GD, soff, rnd):
    o = [f'v_add_f32 v{GD+(i&1)}, v{GD+(i&1)}, v{GD+i}' for i in range(2, 16)] + [f'v_add_f32 v{GD}, v{GD}, v{GD+1}']
    if rnd: o += [f'v_cvt_pk_bf16_f32 v{GD}, v{GD}, v{GD}', f'v_and_b32 v{GD}, 0xffff0000, v{GD}']
    return o + ['v_lshlrev_b32 v2, 2, v0', f'v_cmp_gt_u32 vcc, {N}, v0', f'v_mov_b32 v3, {OOB}', 's_nop 0',
                'v_cndmask_b32 v2, v3, v2, vcc', f'buffer_store_dword v{GD}, v2, {s(SWS,4)}, s{soff} offen sc0 sc1']
```

```python
from core import *
LOG2E = 1.4426950408889634
QSCALE = LOG2E / 128**0.5
def bf16_round(A, r, t):
    A(f'v_cvt_pk_bf16_f32 v{r}, v{r}, v{r}\nv_and_b32 v{r}, 0xffff0000, v{r}')

def allreduce(rs, ts):
    o = []
    for sh in (1, 2, 4, 8):
        if len(rs) < 3: o.append('s_nop %d' % (2 - len(rs)))
        for r in rs: o.append(f'v_add_f32_dpp v{r}, v{r}, v{r} row_ror:{sh} row_mask:0xf bank_mask:0xf')
    for op in ('v_permlane16_swap_b32', 'v_permlane32_swap_b32'):
        for r, t in zip(rs, ts): o.append(f'v_mov_b32 v{t}, v{r}')
        o.append('s_nop 1')
        for r, t in zip(rs, ts): o.append(f'{op} v{r}, v{t}')
        o.append('s_nop 1')
        for r, t in zip(rs, ts): o.append(f'v_add_f32 v{r}, v{r}, v{t}')
    return o

def kv_kernel(A, name='kv_kernel'):
    header(A, name, 256)
    A('s_load_dwordx4 s[4:7], s[0:1], 0\ns_load_dwordx4 s[8:11], s[0:1], 16\ns_load_dwordx2 s[12:13], s[0:1], 32')
    A('s_load_dwordx4 s[16:19], s[0:1], 72\ns_load_dwordx4 s[20:23], s[0:1], 96')
    VL, VT = 1, 2
    A('v_and_b32 v1, 63, v0\nv_lshrrev_b32 v2, 6, v0\ns_nop 0\nv_readfirstlane_b32 s3, v2')
    A('s_and_b32 s24, s2, 7\ns_lshr_b32 s25, s2, 3')
    A('s_and_b32 s26, s25, 3\ns_lshl_b32 s27, s24, 2\ns_add_u32 s26, s26, s27')
    A('s_lshr_b32 s27, s25, 2')
    A('s_lshl_b32 s28, s24, 5\ns_add_u32 s28, s28, s25')
    A('s_waitcnt lgkmcnt(0)'); A.stamp(8)
    SUK, SUV, SCK, SWM, SC, SX, SWS, SDB, SWQ = 40, 44, 48, 52, 56, 60, 64, 68, 72
    srd(A, SUK, 10, 0, 4*MB, 4096); srd(A, SUV, 12, 0, 4*MB, 4096); srd(A, SCK, 6, 0, 2*MB)
    srd(A, SWM, 18, 0, 1024*6144*2); srd(A, SC, 16, 0, 2048); srd(A, SX, 4, 0, 4*MB)
    srd(A, SWS, 22, 0, 40*MB); srd(A, SDB, 20, 0, 256); srd(A, SWQ, 8, 0, 8*MB)
    g = Gemm(MT=2, NT=8, G=1, KS=4, D=2, amode='lds', ldw=8192, acc=lambda mt, nt: a((mt*8+nt)*16, 16), bfr=64, afr=('v', 128),
             vB0=6, vB1=7, vD=8, vAD=16, vAR=24, sB=[SUK, SUK, SUV, SUV], sK=30, sWB=31, sA=SCK, sKA=32, sWA=33, bbase=65536,
             trans=lambda nt: nt < 4, ncol=lambda n64: (n64 & 1)*128)
    g.setup_w(A, VL, VT, 3)
    A('s_lshl_b32 s30, s26, 8')
    A('v_lshrrev_b32 v2, 3, v1\nv_lshlrev_b32 v2, 10, v2\nv_lshrrev_b32 v3, 4, v1\nv_and_b32 v4, 7, v1')
    A('v_xor_b32 v5, v3, v4\nv_lshl_add_u32 v16, v5, 4, v2\nv_xor_b32 v5, 4, v5\nv_lshl_add_u32 v17, v5, 4, v2')
    for i in range(7, 0, -1):
        A(f'v_add_u32 v{16+i}, {i*8192 - (i%4)*1024}, v{16+(i&1)}')
    A('s_lshl_b32 s32, s27, 18\ns_lshl_b32 s33, s3, 16\ns_add_u32 s32, s32, s33\ns_lshl_b32 s33, s3, 13')
    A('v_and_b32 v2, 31, v1\nv_lshlrev_b32 v3, 7, v2\nv_add_u32 v3, s33, v3\nv_bfe_u32 v2, v1, 1, 3\nv_lshrrev_b32 v4, 5, v1\nv_xor_b32 v2, v2, v4')
    for j in range(4): A(f'v_xor_b32 v4, {2*j}, v2\nv_lshl_add_u32 v{24+j}, v4, 4, v3')
    A(g.issue_set(0), g.issue_set(1))
    A.stamp(9)
    GD, GC, GA, XR, CO = 160, 224, 240, 144, 160
    A('v_lshrrev_b32 v2, 2, v0\nv_mul_u32_u24 v3, 12288, v2\nv_and_b32 v4, 3, v0\nv_lshl_add_u32 v3, v4, 4, v3')
    A('s_mul_i32 s34, s28, 48\nv_add_u32 v3, s34, v3\nv_cmp_eq_u32 vcc, 3, v4\nv_mov_b32 v5, 0x40000000\nv_lshlrev_b32 v2, 1, v2\nv_cndmask_b32 v3, v3, v5, vcc')
    for p in range(16): A(f'buffer_load_ushort v{GC+p}, v2, {s(SC,4)}, 0 offen offset:{p*128}')
    for p in range(16): A(f's_mov_b32 s34, {p*64*12288}\nbuffer_load_dwordx4 {v(GD+4*p,4)}, v3, {s(SWM,4)}, s34 offen')
    A('s_lshl_b32 s35, s28, 3\ns_lshl_b32 s36, s3, 1\ns_add_u32 s35, s35, s36')
    A('s_lshl_b32 s34, s35, 11\nv_lshlrev_b32 v28, 5, v1')
    for r in range(2):
        for h in range(2): A(f'buffer_load_dwordx4 {v(XR+8*r+4*h,4)}, v28, {s(SX,4)}, s34 offen offset:{r*2048+h*16}')
    NSIDE = 36; A.stamp(10)
    A(f's_waitcnt vmcnt({NSIDE+16})\ns_barrier')
    A.stamp(1)
    A(g.reads(0, 0, 0))
    silu = []
    for p in range(16):
        c = GC+p
        silu += [f'v_lshlrev_b32 v{c}, 16, v{c}', f'v_mul_f32 v2, {fl(-LOG2E)}, v{c}', 'v_exp_f32 v2, v2', 's_nop 0', 'v_add_f32 v2, 1.0, v2',
                 'v_rcp_f32 v2, v2', 's_nop 0', f'v_mul_f32 v{c}, v{c}, v2', f'v_cvt_pk_bf16_f32 v{c}, v{c}, v{c}', f'v_and_b32 v{c}, 0xffff0000, v{c}']
    fma = []
    for p in range(16):
        for i in range(4):
            d = GD+4*p+i
            op = 'v_mul_f32' if p == 0 else 'v_fmac_f32'
            fma += [f'v_lshlrev_b32 v2, 16, v{d}', f'v_and_b32 v3, 0xffff0000, v{d}', f'{op} v{GA+2*i}, v2, v{GC+p}', f'{op} v{GA+2*i+1}, v3, v{GC+p}']
    red = []
    for sh in (4, 8):
        red += [f'v_add_f32_dpp v{GA+i}, v{GA+i}, v{GA+i} row_ror:{sh} row_mask:0xf bank_mask:0xf' for i in range(8)]
    red += ['v_lshrrev_b32 v2, 4, v0', 'v_and_b32 v3, 3, v0', 'v_lshlrev_b32 v2, 7, v2', 'v_lshl_add_u32 v2, v3, 5, v2', 'v_add_u32 v2, 131072, v2',
            f'ds_write_b128 v2, {v(GA,4)}', f'ds_write_b128 v2, {v(GA+4,4)} offset:16']
    fin = ['v_lshlrev_b32 v2, 2, v1', 'v_add_u32 v2, 131072, v2']
    fin += [f'ds_read_b32 v{GD+i}, v2 offset:{i*128}' for i in range(16)]
    fin2 = [f'v_add_f32 v{GD}, v{GD}, v{GD+i}' for i in range(1, 16)]
    fin2 += [f'v_cvt_pk_bf16_f32 v{GD}, v{GD}, v{GD}', f'v_and_b32 v{GD}, 0xffff0000, v{GD}',
             'v_lshlrev_b32 v2, 2, v0', 's_mul_i32 s34, s28, 96', 'v_add_u32 v2, s34, v2', 'v_cmp_gt_u32 vcc, 24, v0', 'v_mov_b32 v3, 0x40000000', 's_nop 0',
             'v_cndmask_b32 v2, v3, v2, vcc', f'buffer_store_dword v{GD}, v2, {s(SWS,4)}, 0 offen sc0 sc1']
    sig = [['v_cmp_gt_u32 vcc, 1, v0', 'v_mov_b32 v3, 0x40000000', 'v_mov_b32 v4, 1', 'v_cndmask_b32 v2, v3, v0, vcc'],
           [f'buffer_atomic_add v4, v2, {s(SDB,4)}, 0 offen sc1']]
    pre = [['s_lshl_b32 s34, s28, 15', 'v_lshlrev_b32 v2, 7, v0', f'buffer_load_dword v29, v2, {s(SWQ,4)}, s34 offen']]
    XF = 192
    ln1 = []
    for r in range(2):
        for i in range(8):
            ln1 += [f'v_lshlrev_b32 v{XF+16*r+2*i}, 16, v{XR+8*r+i}', f'v_and_b32 v{XF+16*r+2*i+1}, 0xffff0000, v{XR+8*r+i}']
    for i in range(1, 16):
        for r in range(2): ln1.append(f'v_add_f32 v{GA+r}, v{XF+16*r+i}, v{(XF+16*r) if i == 1 else GA+r}')
    ln1 += allreduce([GA, GA+1], [GA+2, GA+3])
    for r in range(2): ln1.append(f'v_mul_f32 v{GA+r}, {fl(1/1024)}, v{GA+r}')
    for i in range(16):
        for r in range(2): ln1.append(f'v_sub_f32 v{XF+16*r+i}, v{XF+16*r+i}, v{GA+r}')
    for i in range(16):
        for r in range(2): ln1.append(f'{"v_mul_f32" if i == 0 else "v_fmac_f32"} v{GA+4+r}, v{XF+16*r+i}, v{XF+16*r+i}')
    ln1 += allreduce([GA+4, GA+5], [GA+2, GA+3])
    ln1 += [f'v_mov_b32 v2, {fl(1e-5)}']
    for r in range(2): ln1.append(f'v_fmac_f32 v2, {fl(1/1024)}, v{GA+4}' if r == 0 else f'v_mov_b32 v3, {fl(1e-5)}')
    ln1 += [f'v_fmac_f32 v3, {fl(1/1024)}, v{GA+5}', 'v_rsq_f32 v2, v2', 'v_rsq_f32 v3, v3', 's_nop 0']
    for i in range(16):
        for r in range(2): ln1.append(f'v_mul_f32 v{XF+16*r+i}, v{XF+16*r+i}, v{2+r}')
    def q(l, i, n): return l[len(l)*i//n: len(l)*(i+1)//n]
    w1 = silu + fma + red
    sides = {1: {j: q(w1, j, 8) for j in range(4)}, 2: {j: q(w1, 4+j, 8) for j in range(4)},
             3: {j: q(ln1, j, 4) for j in range(4)}, 4: {0: fin, 1: fin2, 2: pre}, 5: {0: sig}}
    for sl in range(8):
        g.slab(A, sl, first=(sl == 0), loads=(sl < 6), last=(sl == 7), side=sides.get(sl))
        if sl in (0, 1, 3, 5, 6): A.stamp({0: 11, 1: 2, 3: 3, 5: 12, 6: 13}[sl])
    A.stamp(4)
    A(f'v_mov_b32 v2, 0\n{name}_poll:\nbuffer_load_dword v3, v2, {s(SDB,4)}, 0 offen sc1\ns_waitcnt vmcnt(0)\nv_readfirstlane_b32 s34, v3')
    A(f's_cmp_lt_u32 s34, 256\ns_cbranch_scc1 {name}_poll')
    A.stamp(5)
    A('v_lshlrev_b32 v2, 6, v1')
    for i in range(4):
        A(f'buffer_load_dwordx4 {v(64+4*i,4)}, v2, {s(SWS,4)}, 0 offen offset:{i*16} sc1')
    A('v_add_u32 v2, 4096, v2')
    for i in range(4):
        A(f'buffer_load_dwordx4 {v(80+4*i,4)}, v2, {s(SWS,4)}, 0 offen offset:{i*16} sc1')
    A('v_lshlrev_b32 v2, 4, v1')
    A(f's_lshl_b32 s36, s26, 19\ns_lshl_b32 s37, s27, 16\ns_add_u32 s36, s36, s37\ns_lshl_b32 s37, s3, 14\ns_add_u32 s36, s36, s37')
    k = 0
    for mt in range(2):
        for nt in range(8):
            for h in range(2):
                t = 96 + (k % 4) * 12; k += 1
                ab = (mt*8+nt)*16 + 8*h
                for i in range(8): A(f'v_accvgpr_read_b32 v{t+i}, a{ab+i}')
                for i in range(4): A(f'v_cvt_pk_bf16_f32 v{t+8+i}, v{t+2*i}, v{t+2*i+1}')
                if nt < 4: off = WS_K + mt*8192 + (2*nt+h)*1024
                else: off = WS_V + mt*8192 + h*4096 + (nt-4)*1024
                A(f's_add_u32 s37, s36, {off}\nbuffer_store_dwordx4 {v(t+8,4)}, v2, {s(SWS,4)}, s37 offen')
    A.stamp(6)
    A('s_waitcnt vmcnt(32)')
    for i in range(16):
        A(f'v_add_f32 v{80+i}, 1.0, v{80+i}'); bf16_round(A, 80+i, 0)
        A(f'v_mul_f32 v{80+i}, {fl(QSCALE)}, v{80+i}\nv_mul_f32 v{64+i}, {fl(QSCALE)}, v{64+i}')
    for r in range(2):
        for i in range(16): A(f'v_fma_f32 v{XF+16*r+i}, v{XF+16*r+i}, v{80+i}, v{64+i}')
        for gg in range(2):
            for i, f in enumerate((4*gg, 4*gg+2, 8+4*gg, 10+4*gg)):
                A(f'v_cvt_pk_bf16_f32 v{XR+8*r+4*gg+i}, v{XF+16*r+f}, v{XF+16*r+f+1}')
    A(f's_lshr_b32 s36, s35, 5\ns_lshl_b32 s36, s36, 16\ns_and_b32 s37, s35, 31\ns_lshl_b32 s37, s37, 4\ns_add_u32 s36, s36, s37\ns_add_u32 s36, s36, {WS_H}')
    A('v_lshlrev_b32 v2, 10, v1')
    for r in range(2):
        for gg in range(2): A(f'buffer_store_dwordx4 {v(XR+8*r+4*gg,4)}, v2, {s(SWS,4)}, s36 offen offset:{r*16+gg*512}')
    A.dump(0, 7)
    A(f'{name}_end:\ns_endpgm')
    return name, (256, 131072+4096)
```

```python
from core import *
def halfsum(A, r, t):
    A(f'v_mov_b32 v{t}, v{r}\ns_nop 1\nv_permlane32_swap_b32 v{r}, v{t}\ns_nop 1\nv_add_f32 v{r}, v{r}, v{t}')

def run_gemm(A, g, name, nslab, nextra=0, hook=None):
    D, n = g.D, g.nvm()
    A(f's_waitcnt vmcnt({(D-1)*n - g.G*g.MT}) lgkmcnt(0)\ns_barrier')
    A.stamp(1)
    A(g.reads(0, 0, 0))
    if hook: A(hook(0, -1))
    A(f's_mov_b32 s20, {nslab//D - 1}\n.p2align 3\n{name}_l:')
    for sl in range(D): g.slab(A, sl, side=hook and {ss: hook(sl, ss) for ss in range(g.KS//g.G)})
    A.lstamp(5 + nslab//D - 1)
    A(f's_sub_u32 s20, s20, 1\ns_cmp_lg_u32 s20, 0\ns_cbranch_scc1 {name}_l')
    for sl in range(D):
        g.slab(A, sl, loads=False, tail_loads=(sl == 0), vm=max(0, D-2-sl)*n, last=(sl == D-1),
               side=hook and {ss: hook(sl, ss, sl == D-1) for ss in range(g.KS//g.G)})

def thin_kernel(A, name, which):
    o = which == 'o'
    K = 4096 if o else 3584
    header(A, name, 256)
    A(f's_load_dwordx2 s[4:5], s[0:1], {KA["wo"] if o else KA["w2"]}\ns_load_dwordx2 s[6:7], s[0:1], {KA["x"] if o else KA["out"]}\ns_load_dwordx2 s[22:23], s[0:1], 104')
    A('v_and_b32 v1, 63, v0\nv_lshrrev_b32 v2, 6, v0\ns_nop 0\nv_readfirstlane_b32 s3, v2')
    A('s_and_b32 s24, s2, 7\ns_lshr_b32 s25, s2, 3')
    A('s_and_b32 s26, s24, 3\ns_lshl_b32 s26, s26, 2\ns_and_b32 s27, s25, 3\ns_add_u32 s26, s26, s27')
    A('s_lshr_b32 s27, s24, 2\ns_lshl_b32 s27, s27, 3\ns_lshr_b32 s28, s25, 2\ns_add_u32 s27, s27, s28')
    A('s_lshl_b32 s28, s26, 2\ns_add_u32 s28, s28, s3')
    A('s_waitcnt lgkmcnt(0)'); A.stamp(12)
    SW, SA, SX, SWS = 40, 44, 48, 52
    srd(A, SW, 4, 0, K*2048, 4096); srd(A, SA, 22, WS_CTX if o else WS_FF, K*4096); srd(A, SX, 6, 0, 4*MB); srd(A, SWS, 22, 0, 72*MB)
    AC, WF, XR, C1, C2 = 16, 48, 112, 128, 160
    g = Gemm(MT=1, NT=2, G=4, KS=8, D=4, amode='fm', ldw=2048, acc=lambda mt, nt: v(AC+nt*16, 16), bfr=WF, afr=('a', 0),
             vB0=6, vB1=7, vD=8, vA=[12], sB=[SW], sK=30, sWB=31, sA=SA, sKA=32, bbase=0, trans=lambda nt: True, ncol=lambda n64: 0)
    g.setup_w(A, 1, 2, 3)
    A(f's_lshl_b32 s30, s27, 7\ns_mul_i32 s32, s28, {K*64}\nv_lshlrev_b32 v12, 4, v1')
    A('v_lshrrev_b32 v13, 5, v1\nv_and_b32 v14, 31, v1')
    A('v_lshlrev_b32 v2, 4, v13\ns_lshl_b32 s33, s27, 8')
    for i in range(8):
        A(f's_add_u32 s34, s33, {(2048 if o else 5120)*4}\nbuffer_load_dwordx4 {v(C1+4*i,4)}, v2, {s(SWS,4)}, s34 offen offset:{i*32}')
    A(f's_lshl_b32 s35, s26, 4\ns_add_u32 s35, s35, s27\ns_lshl_b32 s35, s35, 2\ns_add_u32 s35, s35, s3\ns_lshl_b32 s35, s35, 12\ns_add_u32 s35, s35, {WS_X1}')
    A(f's_lshl_b32 s36, s28, 16\ns_lshl_b32 s37, s27, 7\ns_add_u32 s36, s36, s37')
    if o:
        for i in range(8): A(f's_add_u32 s34, s33, {4096*4}\nbuffer_load_dwordx4 {v(C2+4*i,4)}, v2, {s(SWS,4)}, s34 offen offset:{i*32}')
        A('v_lshlrev_b32 v3, 11, v14\nv_lshl_add_u32 v3, v13, 3, v3')
        for i in range(8): A(f'buffer_load_dwordx2 {v(XR+2*i,2)}, v3, {s(SX,4)}, s36 offen offset:{i*16}')
    else:
        for i in range(4): A(f'buffer_load_dwordx4 {v(XR+4*i,4)}, v12, {s(SWS,4)}, s35 offen offset:{i*1024}')
    for sl in range(3): A(g.issue_set(sl))
    A(g.w_dma(3), g.a_load(3, range(4)))
    A.stamp(13)
    for r in range(32): A(f'v_mov_b32 v{AC+r}, 0')
    run_gemm(A, g, name, K//128)
    A.stamp(2)
    XF = WF
    for i in range(16): A(f'v_lshlrev_b32 v{XF+2*i}, 16, v{XR+i}\nv_and_b32 v{XF+2*i+1}, 0xffff0000, v{XR+i}')
    for i in range(32): A(f'v_fmac_f32 v{XF+i}, v{AC+i}, v{C1+i}')
    for i in range(16): A(f'v_cvt_pk_bf16_f32 v{XR+i}, v{XF+2*i}, v{XF+2*i+1}')
    if o:
        for i in range(4): A(f'buffer_store_dwordx4 {v(XR+4*i,4)}, v12, {s(SWS,4)}, s35 offen offset:{i*1024}')
        for i in range(16): A(f'v_lshlrev_b32 v{XF+2*i}, 16, v{XR+i}\nv_and_b32 v{XF+2*i+1}, 0xffff0000, v{XR+i}')
        for i in range(32):
            A(f'v_add_f32 v{C2+i}, 1.0, v{C2+i}\nv_cvt_pk_bf16_f32 v{C2+i}, v{C2+i}, v{C2+i}\nv_and_b32 v{C2+i}, 0xffff0000, v{C2+i}\nv_mul_f32 v{C2+i}, v{C2+i}, v{XF+i}')
        for i in range(16): A(f'v_cvt_pk_bf16_f32 v{AC+i}, v{C2+2*i}, v{C2+2*i+1}')
        A(f's_lshl_b32 s36, s28, 16\ns_lshl_b32 s37, s27, 12\ns_add_u32 s36, s36, s37\ns_add_u32 s36, s36, {WS_X1G}')
        for i in range(4): A(f'buffer_store_dwordx4 {v(AC+4*i,4)}, v12, {s(SWS,4)}, s36 offen offset:{i*1024}')
        A(f'v_add_f32 v2, v{XF}, v{XF+1}')
        for i in range(2, 32): A(f'v_add_f32 v2, v2, v{XF+i}')
        halfsum(A, 2, 4)
        A(f'v_mul_f32 v2, {fl(1/64)}, v2')
        for i in range(32): A(f'v_sub_f32 v{XF+i}, v{XF+i}, v2\n{"v_mul_f32" if i == 0 else "v_fmac_f32"} v3, v{XF+i}, v{XF+i}')
        halfsum(A, 3, 4)
        A(f's_lshl_b32 s36, s28, 12\ns_lshl_b32 s37, s27, 3\ns_add_u32 s36, s36, s37\ns_add_u32 s36, s36, {WS_ST}\nv_lshlrev_b32 v4, 7, v14')
        A(f'buffer_store_dwordx2 v[2:3], v4, {s(SWS,4)}, s36 offen')
    else:
        A('v_lshlrev_b32 v3, 11, v14\nv_lshl_add_u32 v3, v13, 4, v3')
        for m in range(4):
            A(f'v_permlane32_swap_b32 v{XR+4*m}, v{XR+4*m+2}\nv_permlane32_swap_b32 v{XR+4*m+1}, v{XR+4*m+3}')
        for m in range(4): A(f'buffer_store_dwordx4 {v(XR+4*m,4)}, v3, {s(SX,4)}, s36 offen offset:{m*32}')
    A.stamp(3); A.dump(2 if o else 4, 4)
    A(f'{name}_end:\ns_endpgm')
    return name, (256, 65536), 384

def ffn1_kernel(A, name='ffn1_kernel'):
    header(A, name, 224)
    A(f's_load_dwordx2 s[4:5], s[0:1], {KA["w1"]}\ns_load_dwordx2 s[22:23], s[0:1], 104')
    A('v_and_b32 v1, 63, v0\nv_lshrrev_b32 v2, 6, v0\ns_nop 0\nv_readfirstlane_b32 s3, v2')
    A('s_and_b32 s24, s2, 7\ns_lshr_b32 s25, s2, 3')
    A('s_and_b32 s26, s24, 1\ns_lshl_b32 s26, s26, 2\ns_and_b32 s27, s25, 3\ns_add_u32 s26, s26, s27')
    A('s_lshr_b32 s27, s24, 1\ns_mul_i32 s27, s27, 7\ns_lshr_b32 s28, s25, 2\ns_add_u32 s27, s27, s28')
    A('s_lshl_b32 s28, s26, 3\ns_lshl_b32 s29, s3, 1\ns_add_u32 s28, s28, s29')
    A('s_waitcnt lgkmcnt(0)'); A.stamp(12)
    SW, SA, SWS, SF = 40, 44, 48, 52
    srd(A, SW, 4, 0, 7*MB, 4096); srd(A, SA, 22, WS_X1G, 4*MB); srd(A, SWS, 22, 0, 72*MB); srd(A, SF, 22, WS_FF, 14*MB)
    AC, WF, AE, EF, WE, VE, VBE, RS = 16, 144, 208, 224, 232, 14, 15, 248
    EB, UB = 65536, 65536+4096
    g = Gemm(MT=2, NT=4, G=2, KS=4, D=4, amode='fm', ldw=7168, acc=lambda mt, nt: v(AC+(mt*4+nt)*16, 16), bfr=WF, afr=('a', 0),
             vB0=6, vB1=7, vD=8, vA=[12, 13], sB=[SW, SW], sK=30, sWB=31, sA=SA, sKA=32, bbase=0, trans=lambda nt: True, ncol=lambda n64: n64*128)
    g.setup_w(A, 1, 2, 3)
    A('s_lshl_b32 s30, s27, 8\ns_lshl_b32 s32, s28, 16\nv_lshlrev_b32 v12, 4, v1\nv_add_u32 v13, 65536, v12')
    A('v_bfe_u32 v2, v0, 1, 6\nv_lshlrev_b32 v2, 6, v2\nv_and_b32 v3, 1, v0\nv_lshl_add_u32 v2, v3, 4, v2\nv_lshrrev_b32 v3, 7, v0\nv_lshlrev_b32 v3, 12, v3\nv_sub_u32 v2, v2, v3')
    A(f'v_add_u32 v2, {4096*4}, v2\nbuffer_load_dwordx4 v[16:19], v2, {s(SWS,4)}, 0 offen\nbuffer_load_dwordx4 v[20:23], v2, {s(SWS,4)}, 0 offen offset:32')
    A(f'v_and_b32 v2, 31, v1\nv_lshlrev_b32 v2, 7, v2\nv_lshrrev_b32 v3, 5, v1\nv_lshl_add_u32 v2, v3, 6, v2\ns_lshl_b32 s33, s28, 12\ns_add_u32 s33, s33, {WS_ST}')
    for mt in range(2):
        for i in range(4): A(f'buffer_load_dwordx4 {v(32+16*mt+4*i,4)}, v2, {s(SWS,4)}, s33 offen offset:{i*16}')
        A('s_add_u32 s33, s33, 4096')
    for sl in range(3): A(g.issue_set(sl))
    A(g.w_dma(3), g.a_load(3, range(2)))
    A.stamp(13)
    A(f's_waitcnt vmcnt({3*12+8})'); A.stamp(11)
    A('v_cmp_gt_u32 vcc, 128, v0\nv_mov_b32 v3, 0\nv_mov_b32 v4, 1.0\nv_cndmask_b32 v3, v3, v4, vcc')
    for i in range(8): A(f'v_add_f32 v{16+i}, v{16+i}, v3')
    for i in range(4): A(f'v_cvt_pk_bf16_f32 v{24+i}, v{16+2*i}, v{17+2*i}')
    A(f'v_lshlrev_b32 v2, 4, v0\nv_add_u32 v2, {EB}, v2\nds_write_b128 v2, v[24:27]')
    for mt in range(2):
        b = 32+16*mt
        A(f'v_add_f32 v2, v{b}, v{b+2}')
        for i in range(2, 8): A(f'v_add_f32 v2, v2, v{b+2*i}')
        halfsum(A, 2, 4)
        A(f'v_mul_f32 v2, {fl(1/16)}, v2')
        for i in range(8): A(f'v_sub_f32 v{b+2*i}, v{b+2*i}, v2')
        A(f'v_mul_f32 v3, v{b}, v{b}')
        for i in range(1, 8): A(f'v_fmac_f32 v3, v{b+2*i}, v{b+2*i}')
        A(f'v_mul_f32 v3, {fl(64.0)}, v3')
        for i in range(8): A(f'v_add_f32 v3, v3, v{b+2*i+1}')
        halfsum(A, 3, 4)
        A(f'v_mov_b32 v4, {fl(1e-5)}\nv_fmac_f32 v4, {fl(1/1024)}, v3\nv_rsq_f32 v4, v4\ns_nop 0')
        A(f'v_mov_b32 v{RS+2*mt}, v4\nv_mov_b32 v{RS+2*mt+1}, v4\nv_mul_f32 v4, v4, v2\nv_sub_f32 v{RS+4+2*mt}, 0, v4\nv_sub_f32 v{RS+5+2*mt}, 0, v4')
    A(f'v_and_b32 v2, 1, v1\nv_lshlrev_b32 v2, 11, v2\nv_lshrrev_b32 v3, 5, v1\nv_lshl_add_u32 v2, v3, 4, v2\nv_add_u32 v{VE}, {EB}, v2')
    A(f's_and_b32 s33, s3, 1\ns_lshl_b32 s33, s33, 6\nv_xor_b32 v{VBE}, s33, v6\ns_lshr_b32 s33, s3, 1\ns_lshl_b32 s33, s33, 10\nv_add_u32 v{VBE}, s33, v{VBE}')
    for r in range(128): A(f'v_mov_b32 v{AC+r}, 0')
    for r in range(16): A(f'v_mov_b32 v{AE+r}, 0')
    def hook(sl, ss, last=False):
        o = []
        if ss >= 0:
            o += [mfma(v(AE, 16), v(WE+4*jj, 4), v(EF+4*jj, 4), v(AE, 16)) for jj in range(2)]
        nsl, nss = (sl, ss+1) if ss < 1 else ((sl+1) % 4, 0)
        if last and ss == 1: return o
        if ss == 1 and sl == 3: o.append(f'v_add_u32 v{VE}, 512, v{VE}')
        for jj in range(2):
            j = nss*2 + jj
            o.append(f'ds_read_b128 {v(EF+4*jj,4)}, v{VE} offset:{(nsl*4+j)*32}')
            for rd in range(2): o.append(f'ds_read_b64_tr_b16 {v(WE+4*jj+2*rd,2)}, v{VBE} offset:{nsl*16384 + (2*j+rd)*2048}')
        return o
    run_gemm(A, g, name, 16, hook=hook)
    A.stamp(2)
    A(f'v_and_b32 v2, 1, v1\nv_lshlrev_b32 v2, 9, v2\nv_lshrrev_b32 v3, 5, v1\nv_lshlrev_b32 v3, 6, v3\ns_lshl_b32 s33, s3, 7\nv_add3_u32 v2, v2, v3, s33\nv_add_u32 v2, {UB}, v2\nv_add_u32 v3, {UB}, v3')
    A('s_nop 7')
    for i in range(4): A(f'ds_write_b128 v2, {v(AE+4*i,4)} offset:{i*16}')
    A('s_waitcnt lgkmcnt(0)\ns_barrier')
    UT = WF
    for nt in range(2):
        for vec in range(2):
            for i in range(4): A(f'ds_read_b128 {v(UT+32*nt+16*vec+4*i,4)}, v3 offset:{vec*512+nt*128+i*16}')
    A(f's_mul_i32 s33, s28, {224*1024}\ns_lshl_b32 s34, s27, 13\ns_add_u32 s33, s33, s34\ns_add_u32 s34, s33, {224*1024}')
    for nt in range(4):
        u = UT+32*(nt & 1)
        A(f's_waitcnt lgkmcnt({8 if nt < 3 else 0})')
        for mt in range(2):
            ac = AC+(mt*4+nt)*16
            for i in range(0, 16, 2):
                A(f'v_pk_fma_f32 {v(AE+i,2)}, {v(u+i,2)}, {v(RS+4+2*mt,2)}, {v(u+16+i,2)}')
            for i in range(0, 16, 2):
                A(f'v_pk_fma_f32 {v(ac+i,2)}, {v(ac+i,2)}, {v(RS+2*mt,2)}, {v(AE+i,2)}')
            for i in range(8): A(f'v_cvt_pk_bf16_f32 v{ac+i}, v{ac+2*i}, v{ac+2*i+1}')
            for i in range(8): A(f'v_pk_max_i16 v{ac+i}, v{ac+i}, 0')
            if nt == 2 and mt == 0: A('s_add_u32 s33, s33, 4096\ns_add_u32 s34, s34, 4096')
            for h in range(2): A(f'buffer_store_dwordx4 {v(ac+4*h,4)}, v12, {s(SF,4)}, s{33+mt} offen offset:{((2*nt+h) % 4)*1024}')
        if nt < 2:
            for vec in range(2):
                for i in range(4): A(f'ds_read_b128 {v(u+16*vec+4*i,4)}, v3 offset:{vec*512+(nt+2)*128+i*16}')
    A.stamp(3); A.dump(3, 4)
    A(f'{name}_end:\ns_endpgm')
    return name, (224, 65536+4096+1024), 384
```

```python
from core import *
from k1 import allreduce, bf16_round, LOG2E, QSCALE
SWQ = 72
def kv_store(mt, nt, h, t):
    ab = (mt*8+nt)*16 + 8*h
    off = WS_K + mt*8192 + (2*nt+h)*1024 if nt < 4 else WS_V + mt*8192 + h*4096 + (nt-4)*1024
    return ([f'v_accvgpr_read_b32 v{t+i}, a{ab+i}' for i in range(8)] + [f'v_cvt_pk_bf16_f32 v{t+8+i}, v{t+2*i}, v{t+2*i+1}' for i in range(4)] +
            [[f's_add_u32 s37, s36, {off}', f'buffer_store_dwordx4 {v(t+8,4)}, v5, {s(SWS,4)}, s37 offen sc1']])

def kv_off(mt, nt, h): return WS_K + mt*8192 + (2*nt+h)*1024 if nt < 4 else WS_V + mt*8192 + h*4096 + (nt-4)*1024
def kv_pack(mt, nt, h, t, d):
    ab = (mt*8+nt)*16 + 8*h
    return [f'v_accvgpr_read_b32 v{t+i}, a{ab+i}' for i in range(8)] + [f'v_cvt_pk_bf16_f32 v{d+i}, v{t+2*i}, v{t+2*i+1}' for i in range(4)]
def kv_put(mt, nt, h, d): return [[f's_add_u32 s37, s36, {kv_off(mt, nt, h)}', f'buffer_store_dwordx4 {v(d,4)}, v5, {s(SWS,4)}, s37 offen sc1']]
def phase_kv(A, name):
    A('s_load_dwordx16 s[4:19], s[0:1], 0\ns_load_dwordx8 s[84:91], s[0:1], 64\ns_load_dwordx4 s[92:95], s[0:1], 96')
    A('v_and_b32 v1, 63, v0\nv_lshrrev_b32 v2, 6, v0\ns_nop 0\nv_readfirstlane_b32 s3, v2')
    A('s_and_b32 s24, s2, 7\ns_lshr_b32 s25, s2, 3')
    A('s_and_b32 s26, s25, 3\ns_lshl_b32 s27, s24, 2\ns_add_u32 s26, s26, s27')
    A('s_lshr_b32 s27, s25, 2')
    A('s_lshl_b32 s28, s24, 5\ns_add_u32 s28, s28, s25')
    A('s_waitcnt lgkmcnt(0)\ns_mov_b32 s22, s94\ns_mov_b32 s23, s95\ns_mov_b32 s97, 0')
    SUK, SUV, SCK, SWM, SC, SDB = 40, 44, 48, 52, 56, 64
    srd(A, SWS, 22, 0, 96*MB); srd(A, SWM, 88, 0, 1024*6144*2); srd(A, SC, 86, 0, 2048)
    GD, GC, GA, XR, XF, CO = 160, 224, 228, 144, 192, 32
    srd(A, SUK, 10, 0, 4*MB, 4096); srd(A, SUV, 12, 0, 4*MB, 4096); srd(A, SCK, 6, 0, 2*MB)
    A(f'v_lshlrev_b32 v31, 10, v1\ns_lshl_b32 s21, s25, 16\ns_lshl_b32 s34, s3, 7\ns_add_u32 s21, s21, s34\nbuffer_load_dword v29, v31, {s(SCK,4)}, s21 offen')
    A('v_lshrrev_b32 v2, 4, v1\nv_lshlrev_b32 v2, 19, v2\nv_bfe_u32 v3, v1, 3, 1\nv_lshl_add_u32 v2, v3, 13, v2\nv_and_b32 v3, 7, v1\nv_lshl_add_u32 v2, v3, 7, v2')
    A('s_and_b32 s34, s3, 1\ns_lshl_b32 s34, s34, 21\ns_lshl_b32 s35, s25, 14\ns_add_u32 s34, s34, s35\ns_lshl_b32 s35, s24, 10\ns_add_u32 s34, s34, s35\ns_add_u32 s34, s34, 4096')
    A(f's_cmp_lt_u32 s3, 2\ns_cbranch_scc1 {name}_pk\nbuffer_load_dword v29, v2, {s(SUV,4)}, s34 offen{NT}\ns_branch {name}_pv\n{name}_pk:\nbuffer_load_dword v29, v2, {s(SUK,4)}, s34 offen{NT}\n{name}_pv:')
    A(f'v_cmp_gt_u32 vcc, 8, v0\nv_mov_b32 v3, {OOB}\nv_lshlrev_b32 v2, 2, v0\nv_cndmask_b32 v2, v3, v2, vcc\nv_mov_b32 v3, 0')
    A(f's_lshl_b32 s34, s2, 5\ns_add_u32 s34, s34, {WS_FLG}\nbuffer_store_dword v3, v2, {s(SWS,4)}, s34 offen sc0 sc1')
    A('s_and_b32 s29, s28, 3\ns_lshl_b32 s34, s29, 9\nv_lshrrev_b32 v3, 2, v0\nv_lshlrev_b32 v2, 1, v3\nv_mul_u32_u24 v3, 12288, v3\nv_and_b32 v4, 3, v0\nv_lshl_add_u32 v3, v4, 4, v3')
    for j in range(4): A(f'buffer_load_ushort v{GC+j}, v2, {s(SC,4)}, s34 offen offset:{j*128}')
    A(f's_mul_i32 s34, s29, {256*12288}\ns_lshr_b32 s35, s28, 2\ns_lshl_b32 s35, s35, 6\ns_add_u32 s34, s34, s35')
    for j in range(4): A(f'buffer_load_dwordx4 {v(GD+4*j,4)}, v3, {s(SWM,4)}, s34 offen{NT}\ns_add_u32 s34, s34, {64*12288}')
    A(f's_lshl_b32 s29, s29, 13\ns_lshl_b32 s35, s35, 1\ns_add_u32 s29, s29, s35\ns_add_u32 s29, s29, {WS_PART}')
    g = Gemm(MT=2, NT=8, G=1, KS=4, D=2, amode='lds', ldw=8192, acc=lambda mt, nt: a((mt*8+nt)*16, 16), bfr=64, afr=('v', 128),
             vB0=6, vB1=7, vD=8, vAD=16, vAR=24, sB=[SUK, SUK, SUV, SUV], sK=30, sWB=31, sA=SCK, sKA=32, sWA=33, bbase=65536,
             trans=lambda nt: nt < 4, ncol=lambda n64: (n64 & 1)*128)
    g.wnt = NT
    g.setup_w(A, 1, 2, 3)
    A('s_lshl_b32 s30, s26, 8')
    A('v_lshrrev_b32 v2, 3, v1\nv_lshlrev_b32 v2, 10, v2\nv_lshrrev_b32 v3, 4, v1\nv_and_b32 v4, 7, v1')
    A('v_xor_b32 v5, v3, v4\nv_lshl_add_u32 v16, v5, 4, v2\nv_xor_b32 v5, 4, v5\nv_lshl_add_u32 v17, v5, 4, v2')
    for i in range(7, 0, -1): A(f'v_add_u32 v{16+i}, {i*8192 - (i%4)*1024}, v{16+(i&1)}')
    A('s_lshl_b32 s32, s27, 18\ns_lshl_b32 s33, s3, 16\ns_add_u32 s32, s32, s33\ns_lshl_b32 s33, s3, 13')
    A(g.issue_set(0)); A.mark('kv0')
    A('v_and_b32 v2, 31, v1\nv_lshlrev_b32 v3, 7, v2\nv_add_u32 v3, s33, v3\nv_bfe_u32 v2, v1, 1, 3\nv_lshrrev_b32 v4, 5, v1\nv_xor_b32 v2, v2, v4')
    for j in range(4): A(f'v_xor_b32 v4, {2*j}, v2\nv_lshl_add_u32 v{24+j}, v4, 4, v3')
    srd(A, SX, 4, 0, 4*MB); srd(A, SDB, 92, 0, 256); srd(A, SWQ, 8, 0, 8*MB, 4096)
    A('s_lshl_b32 s35, s28, 3\ns_lshl_b32 s36, s3, 1\ns_add_u32 s35, s35, s36')
    A('v_lshlrev_b32 v28, 5, v1\nv_lshlrev_b32 v5, 4, v1')
    pre1 = [['s_add_u32 s21, s21, 512', f'buffer_load_dword v29, v31, {s(SCK,4)}, s21 offen']]
    xl = [['s_lshl_b32 s34, s35, 11'] + [f'buffer_load_dwordx4 {v(XR+8*r+4*h,4)}, v28, {s(SX,4)}, s34 offen offset:{r*2048+h*16}' for r in range(2) for h in range(2)]]
    preq = [['v_lshrrev_b32 v252, 3, v0', 'v_lshlrev_b32 v252, 13, v252', 'v_and_b32 v253, 7, v0', 'v_lshl_add_u32 v252, v253, 7, v252'],
            ['s_lshl_b32 s34, s25, 18', 's_lshl_b32 s36, s24, 10', 's_add_u32 s34, s34, s36', 's_add_u32 s34, s34, 4096', f'buffer_load_dword v29, v252, {s(SWQ,4)}, s34 offen{NT}']]
    T = 244
    ln1 = []
    for r in range(2):
        for i in range(8): ln1 += [f'v_lshlrev_b32 v{XF+16*r+2*i}, 16, v{XR+8*r+i}', f'v_and_b32 v{XF+16*r+2*i+1}, 0xffff0000, v{XR+8*r+i}']
    for i in range(1, 16):
        for r in range(2): ln1.append(f'v_add_f32 v{T+r}, v{XF+16*r+i}, v{(XF+16*r) if i == 1 else T+r}')
    ln1 += allreduce([T, T+1], [T+2, T+3])
    for r in range(2): ln1.append(f'v_mul_f32 v{T+r}, {fl(1/1024)}, v{T+r}')
    for i in range(16):
        for r in range(2): ln1.append(f'v_sub_f32 v{XF+16*r+i}, v{XF+16*r+i}, v{T+r}')
    for i in range(16):
        for r in range(2): ln1.append(f'{"v_mul_f32" if i == 0 else "v_fmac_f32"} v{T+4+r}, v{XF+16*r+i}, v{XF+16*r+i}')
    ln1 += allreduce([T+4, T+5], [T+2, T+3])
    ln1 += [f'v_mov_b32 v{T}, {fl(1e-5)}', f'v_mov_b32 v{T+1}, {fl(1e-5)}', f'v_fmac_f32 v{T}, {fl(1/1024)}, v{T+4}', f'v_fmac_f32 v{T+1}, {fl(1/1024)}, v{T+5}',
            f'v_rsq_f32 v{T}, v{T}', f'v_rsq_f32 v{T+1}, v{T+1}', 's_nop 0']
    for i in range(16):
        for r in range(2): ln1.append(f'v_mul_f32 v{XF+16*r+i}, v{XF+16*r+i}, v{T+r}')
    E, CF, HS = 131072, 133120, 141312
    msig = [['s_waitcnt vmcnt(@ms@)'] + flag_store(2, 252, 'byte', SDB)]
    mpoll = [['v_lshlrev_b32 v31, 2, v1', poll_load(250, 31, SDB), ';@mark mp']]
    mchk = [['s_waitcnt vmcnt(@mp@)'] + poll_check(name+'_m', 250, 31, '0x01010101', SDB), ['v_lshlrev_b32 v2, 5, v0', f's_mov_b32 s34, {WS_PART}']]
    for k in range(4): mchk += [f'buffer_load_dwordx4 {v(CO+8*k,4)}, v2, {s(SWS,4)}, s34 offen sc1', [f'buffer_load_dwordx4 {v(CO+8*k+4,4)}, v2, {s(SWS,4)}, s34 offen offset:16 sc1', 's_add_u32 s34, s34, 8192']]
    csum = ['s_waitcnt vmcnt(@co@)', ['s_cmp_ge_u32 s3, 2', 's_cselect_b32 s34, 1.0, 0']]
    for k in range(1, 4): csum += [f'v_add_f32 v{CO+i}, v{CO+i}, v{CO+8*k+i}' for i in range(8)]
    for op in ('v_cvt_pk_bf16_f32 @, @, @', 'v_and_b32 @, 0xffff0000, @', 'v_add_f32 @, s34, @', 'v_cvt_pk_bf16_f32 @, @, @', 'v_and_b32 @, 0xffff0000, @', f'v_mul_f32 @, {fl(QSCALE)}, @'):
        csum += [op.replace('@', f'v{CO+i}') for i in range(8)]
    csum += ['v_lshlrev_b32 v2, 5, v0', f'v_add_u32 v2, {CF}, v2', f'ds_write_b128 v2, {v(CO,4)}', f'ds_write_b128 v2, {v(CO+4,4)} offset:16']
    crd = ['v_lshlrev_b32 v2, 6, v1', f'v_add_u32 v2, {CF}, v2'] + [f'ds_read_b128 {v(CO+16*k+4*i,4)}, v2 offset:{k*4096+i*16}' for k in range(2) for i in range(4)]
    app = []
    for r in range(2):
        app += [f'v_fma_f32 v{XF+16*r+i}, v{XF+16*r+i}, v{CO+16+i}, v{CO+i}' for i in range(16)]
        for gg in range(2): app += [f'v_cvt_pk_bf16_f32 v{XR+8*r+4*gg+i}, v{XF+16*r+f}, v{XF+16*r+f+1}' for i, f in enumerate((4*gg, 4*gg+2, 8+4*gg, 10+4*gg))]
    app += [['s_lshl_b32 s34, s3, 1', 'v_and_b32 v3, 15, v1', 'v_lshlrev_b32 v2, 8, v1'], 'v_xor_b32 v3, s34, v3', f'v_add_u32 v2, {HS}, v2']
    for r in range(2):
        for gg in range(2): app += [f'v_xor_b32 v4, {gg*8+r}, v3', 'v_lshl_add_u32 v4, v4, 4, v2', f'ds_write_b128 v4, {v(XR+8*r+4*gg,4)}']
    hrd = ['v_lshrrev_b32 v2, 4, v0', 'v_xor_b32 v2, v2, v0', 'v_lshlrev_b32 v2, 4, v2', f'v_add_u32 v2, {HS}, v2'] + [f'ds_read_b128 {v(XR+4*i,4)}, v2 offset:{i*4096}' for i in range(4)]
    hst = [['s_lshr_b32 s36, s28, 2', 's_lshl_b32 s36, s36, 16', 's_and_b32 s37, s28, 3', 's_lshl_b32 s37, s37, 7'], ['s_add_u32 s36, s36, s37', f's_add_u32 s36, s36, {WS_H}'],
           ['v_lshrrev_b32 v2, 3, v0', 'v_lshlrev_b32 v2, 9, v2', 'v_and_b32 v3, 7, v0', 'v_lshl_add_u32 v2, v3, 4, v2']]
    hst += [[f'buffer_store_dwordx4 {v(XR+4*i,4)}, v2, {s(SWS,4)}, s36 offen sc1', 's_add_u32 s36, s36, 16384'] for i in range(4)] + [';@mark hs']
    hsig = [[f's_add_u32 s36, s28, {WS_FLG+F_H}'] + flag_store(36, 2, 'byte')]
    hpoll = [['s_sub_u32 s28, 15, s27', 's_lshl_b32 s28, s28, 2', 's_add_u32 s28, s28, s3', 's_lshl_b32 s29, s27, 2', 's_add_u32 s29, s29, s3'],
             ['v_mov_b32 v2, s28', 'v_mov_b32 v3, s29', 'v_and_b32 v4, 1, v1', 'v_cmp_eq_u32 vcc, 0, v4', 's_nop 1'],
             ['v_cndmask_b32 v2, v3, v2, vcc', 'v_lshlrev_b32 v2, 2, v2', f'v_add_u32 v251, {WS_FLG+F_H}, v2', poll_load(250, 251), ';@mark hp']]
    w0 = gemv(4, 4, GD, GC, GA, E)
    sides = {0: {0: g.issue_set(1) + [';@mark kv1'] + q(w0, 0, 5), 1: pre1 + xl + q(w0, 1, 5) + q(w0, 2, 5), 2: q(w0, 3, 5) + q(w0, 4, 5), 3: fin(32, GD, E)},
             1: {0: fin2(32, GD, 29, False) + [';@mark ms'], 2: msig, 3: q(ln1, 0, 5)},
             2: {0: q(ln1, 1, 5), 1: q(ln1, 2, 5), 2: mpoll + q(ln1, 3, 5), 3: q(ln1, 4, 5)},
             3: {1: mchk, 2: preq},
             4: {0: q(csum, 0, 3), 1: q(csum, 1, 3), 2: q(csum, 2, 3), 3: crd},
             5: {0: q(app, 0, 3), 1: q(app, 1, 3), 2: q(app, 2, 3), 3: hrd},
             6: {0: hst, 3: hsig}, 7: {3: hpoll}}
    A('s_waitcnt vmcnt(@kv0@)\ns_barrier'); A.stamp(1)
    A(g.reads(0, 0, 0))
    for sl in range(8):
        g.slab(A, sl, first=(sl == 0), loads=(sl < 6), last=(sl == 7), side=sides.get(sl), tag='kv', vm='@hs@' if sl == 6 else f'@kv{sl+1}@')
        A.stamp(2+sl)
```

```python
from core import *
from m1 import kv_store, kv_pack, kv_put, SWQ
BIG = 2.0**100
QR, SR, NM, KF, VF, PR, ET = 16, 80, 112, 144, 176, 208, 224
LA, US, VKN, VVC, VTQ, VDM, MT0 = 232, 234, 235, 236, 237, 14, 238
STHR, SFLR = 76, 78
SKV = SCT = SWS
SWO, SW1, SW2 = 48, 52, 56
def phase_attn(A, name):
    g = Gemm(MT=2, NT=4, G=2, KS=4, D=4, amode='fm', ldw=8192, acc=lambda mt, nt: v(QR+(mt*4+nt)*16, 16), bfr=KF, afr=('a', 128),
             vB0=6, vB1=7, vD=8, vA=[12, 13], sB=[SWQ, SWQ], sK=30, sWB=31, sA=SWS, sKA=32, bbase=98304,
             trans=lambda nt: True, ncol=lambda n64: n64*128)
    A('s_barrier')
    g.wnt = NT
    g.setup_w(A, 1, 2, 3)
    A(f's_lshl_b32 s30, s26, 8\ns_mov_b32 s32, {WS_H}')
    for sl in range(4): A(g.w_dma(sl))
    A(f'v_mov_b32 v{VDM}, v5\ns_lshl_b32 s33, s28, 16\nv_add_u32 v12, s33, v5\ns_lshl_b32 s33, s29, 16\nv_add_u32 v13, s33, v5')
    A('s_lshl_b32 s36, s26, 19\ns_lshl_b32 s37, s27, 16\ns_add_u32 s36, s36, s37\ns_lshl_b32 s37, s3, 14\ns_add_u32 s36, s36, s37')
    srd(A, SWO, 14, 0, 8*MB, 4096); srd(A, SW1, 18, 0, 7*MB, 4096); srd(A, SW2, 84, 0, 7*MB, 4096)
    dst = lambda nt, h: (208 if nt < 5 else 60) + 8*nt + 4*h
    for sl in range(4):
        for nt in (2*sl, 2*sl+1):
            for h in range(2): A(kv_pack(1, nt, h, 16 + 8*h, dst(nt, h)))
        if sl == 0: A('s_waitcnt vmcnt(@hp@)', poll_check(name+'_h', 250, 251, '0x01010101')); A.stamp(10)
        A(g.a_load(sl, range(4 if sl < 3 else 2))); A.mark(f'q{sl}')
    for nt in range(5, 8):
        for h in range(2): A(kv_put(1, nt, h, dst(nt, h)))
    put1 = [x for nt in range(5) for h in range(2) for x in kv_put(1, nt, h, dst(nt, h))]
    rest = [x for nt in range(8) for h in range(2) for x in kv_store(0, nt, h, 208 + ((2*nt+h) % 3)*12)]
    srd(A, 40, 88, 0, 1024*6144*2); srd(A, 44, 86, 0, 2048)
    late0 = [['v_lshrrev_b32 v244, 1, v0', 'v_lshlrev_b32 v243, 1, v244', 'v_mul_u32_u24 v244, 12288, v244', 'v_and_b32 v245, 1, v0', 'v_lshl_add_u32 v244, v245, 4, v244'],
             ['s_lshl_b32 s82, s24, 5', 's_add_u32 s82, s82, s25', 's_lshl_b32 s82, s82, 5', 's_add_u32 s82, s82, 4096', 's_lshl_b32 s83, s3, 10', 's_add_u32 s83, s83, 131072']]
    late = [['s_mov_b32 m0, s83', 's_add_u32 s83, s83, 4096', f'buffer_load_dwordx4 v244, s[40:43], s82 offen{NT} lds', f's_add_u32 s82, s82, {128*12288}']]
    latec = [f'buffer_load_ushort a{160+j}, v243, s[44:47], 0 offen offset:{j*256}' for j in range(8)]
    kvst = [['s_lshl_b32 s34, s26, 19', 's_lshl_b32 s33, s3, 12', 's_add_u32 s34, s34, s33', f's_add_u32 s34, s34, {WS_K}', 's_mov_b32 s38, s33', 's_add_u32 s39, s33, 16384'],
            [f's_add_u32 s35, s34, {16*MB}', 's_lshl_b32 s33, s27, 15', f's_sub_u32 s33, {32*16384}, s33', 's_add_u32 s36, s34, s33', 's_add_u32 s37, s35, s33']]
    def kvdma(which):
        so, se, sm = (34, 36, 38) if which == 'K' else (35, 37, 39)
        it = [[f's_cmp_lt_u32 s{so}, s{se}', f's_cselect_b32 s33, s{so}, 0x7f000000', f's_mov_b32 m0, s{sm}', f's_add_u32 s{so}, s{so}, 16384',
               f'buffer_load_dwordx4 v{VDM}, {s(SKV,4)}, s33 offen sc1 lds']]
        for i in range(1, 4): it.append([f'buffer_load_dwordx4 v{VDM}, {s(SKV,4)}, s33 offen offset:{i*1024} sc1 lds'])
        it[2] += [f's_add_u32 s{sm}, s{sm}, 32768']; it[3] += [f's_and_b32 s{sm}, s{sm}, 0x1ffff']
        return it
    A('s_waitcnt vmcnt(@q0@)\ns_barrier'); A.stamp(11)
    A(g.reads(0, 0, 0))
    ksig = ['s_lshl_b32 s33, s26, 5', 's_lshl_b32 s21, s27, 2', 's_add_u32 s33, s33, s21', f's_add_u32 s33, s33, {WS_FLG+F_KV}'] + flag_store(33, 2)
    kpoll = [['v_and_b32 v2, 7, v1', 'v_lshlrev_b32 v2, 2, v2', 's_lshl_b32 s33, s26, 5', f's_add_u32 s33, s33, {WS_FLG+F_KV}', 'v_add_u32 v251, s33, v2', poll_load(250, 251), ';@mark kp']]
    qs = {sl: {ss: q(put1, 2*sl+ss, 8) if sl < 4 else q(rest, 2*sl+ss-8, 12) for ss in range(2)} for sl in range(10)}
    qs.update({10: {0: kvst}, 11: {1: [ksig]}})
    for sl in range(12):
        g.slab(A, sl, zero=(sl == 0), tag='q', vm='@kvs@' if sl == 11 else f'@q{sl+1}@', side=qs.get(sl))
        if sl % 4 == 3: A.stamp(12 + sl//4)
    zo = [f'v_accvgpr_write_b32 a{i}, 0' for i in range(128)]
    zp = [f'v_mov_b32 v{PR+i}, 0' for i in range(16)] + [f'v_mov_b32 v{LA}, 0', f'v_mov_b32 v{LA+1}, 0',
          f'v_mov_b32 v{VVC}, v{VDM}', f'v_add_u32 v{VKN}, 32768, v{VDM}',
          'v_and_b32 v2, 31, v1', 's_lshl_b32 s33, s3, 5', 'v_add_u32 v2, s33, v2', 'v_lshrrev_b32 v3, 5, v1', 'v_lshlrev_b32 v3, 2, v3', 'v_sub_u32 v2, v2, v3',
          'v_cvt_f32_i32 v2, v2', 'v_add_f32 v2, 0.5, v2', f'v_mul_f32 v{VTQ}, {fl(BIG)}, v2',
          f's_mov_b32 s{STHR}, -1.0', f's_mov_b32 s{STHR+1}, -1.0', f's_mov_b32 s{SFLR}, 0xff800000', f's_mov_b32 s{SFLR+1}, 0xff800000']
    pre = [['s_lshl_b32 s21, s2, 15', 's_add_u32 s21, s21, 4096', 'v_lshlrev_b32 v242, 7, v0', f'buffer_load_dword v239, v242, {s(SWO,4)}, s21 offen'],
           ['s_mul_i32 s21, s2, 28672', 's_add_u32 s21, s21, 4096', f'buffer_load_dword v240, v242, {s(SW1,4)}, s21 offen'], [f'buffer_load_dword v241, v242, {s(SW2,4)}, s21 offen']]
    g.slab(A, 12, loads=False, tag='q', vm='@q13@', side={0: zo[:32], 1: zo[32:64]})
    g.slab(A, 13, loads=False, tail_loads=False, vm='@q14@', side={0: kpoll + zo[64:96], 1: zo[96:]})
    g.slab(A, 14, loads=False, tail_loads=False, vm='@kp@', post=poll_check(name+'_k', 250, 251, 1), side={0: zp + late0, 1: kvdma('K') + kvdma('K') + kvdma('V') + [';@mark kv1st']})
    g.slab(A, 15, loads=False, tail_loads=False, last=True, side={0: kvdma('K') + kvdma('V'), 1: pre[:1]})
    kread = lambda r, va, sub: f'ds_read_b128 {v(KF+4*r,4)}, v{va} offset:{sub*8192 + r*1024}'
    vread = lambda r, sub: f'ds_read_b128 {v(VF+4*r,4)}, v{VVC} offset:{16384 + sub*8192 + r*1024}'
    A('s_waitcnt vmcnt(@kv1st@)\ns_barrier')
    A.stamp(15)
    A([kread(r, VVC, 0) for r in range(8)])
    A('s_nop 7')
    for i in range(64): A(f'v_cvt_pk_bf16_f32 v{QR+i}, v{QR+2*i}, v{QR+2*i+1}')
    for i in range(32): A(f'v_mov_b32 v{NM+i}, 0')
    def qk(X, par):
        return [mfma(v(SR+16*par, 16), v(KF+4*r, 4), v(QR+32*X+4*r, 4), v(NM+16*X, 16) if r == 0 else v(SR+16*par, 16)) for r in range(8)]
    def pv(X, par):
        return [mfma(a(64*X+16*(r & 3), 16), v(VF+4*r, 4), v(PR+8*par+4*(r >> 2), 4), a(64*X+16*(r & 3), 16)) for r in range(8)]
    A('s_waitcnt lgkmcnt(0)', qk(0, 0), 's_nop 15')
    def softmax(par, mask=None):
        S = SR+16*par; e = lambda i: ET + (i & 3)
        def ex(i):
            o = []
            if mask is not None:
                c = 32*mask + (i & 3) + 8*(i >> 2)
                o += [f'v_add_f32 v{MT0}, {fl(-c*BIG)}, v{VTQ}', f'v_min_f32 v{S+i}, v{S+i}, v{MT0}']
            return o + [f'v_exp_f32 v{e(i)}, v{S+i}']
        o = ex(0) + ex(1)
        for i in range(0, 16, 2):
            if i > 0: o.append(f'v_add_f32 v{US}, v{US}, v{e(i)}')
            if i < 14: o += ex(i+2)
            o.append(f'v_add_f32 v{US}, v{US if i else e(0)}, v{e(i+1)}')
            o.append(f'v_cvt_pk_bf16_f32 v{PR+8*par+i//2}, v{e(i)}, v{e(i+1)}')
            if i < 14: o += ex(i+3)
        return o
    stubs = []
    def slot(cur, par, nxt, prv, mask=None, kr=None, vr=None, sync=False, adv=False, wk=None, wv=None, fix=False, extra=None, vm=9):
        st = []
        if sync:
            A(f's_waitcnt vmcnt({vm})' + (f' lgkmcnt({wk})' if wk is not None else '') + '\ns_barrier')
            st.append((kvdma('K') + kvdma('V') + late, 0, 15))
        elif wk is not None: A(f's_waitcnt lgkmcnt({wk})')
        m1 = qk(nxt, par ^ 1) if nxt is not None else []
        m2 = pv(prv, par ^ 1); n1 = len(m1); n = n1 + 8
        if wv is not None:
            if n1: st.insert(0, ([f's_waitcnt lgkmcnt({wv})'], n1-1, n1-1))
            else: A(f's_waitcnt lgkmcnt({wv})')
        pre = []
        if kr: pre.append(([kread(r, *kr) for r in range(8)], 0, 7))
        if vr is not None: pre.append(([vread(r, vr) for r in range(8)], n1, n-1))
        sm = softmax(par, mask)
        L = f'{name}_s{len(stubs)}'
        sm += [[f'v_cmp_nge_f32 vcc, s{STHR+cur}, v{US}', f's_cbranch_vccnz {L}', f'{L}r:', f'v_add_f32 v{LA+cur}, v{LA+cur}, v{US}']]
        stubs.append(f'{L}:\ns_call_b64 s[80:81], {name}_fix{cur}{par}{int(fix)}\ns_branch {L}r')
        post = []
        if adv: post.append(([[f'v_mov_b32 v{VVC}, v{VKN}', f'v_add_u32 v{VKN}, 32768, v{VKN}', f'v_and_b32 v{VKN}, 0x1ffff, v{VKN}']], n-1, n-1))
        if extra: post.append((extra, 8, n-1))
        wvs = [x for x in st if isinstance(x[0][0], str)]; oth = [x for x in st if not isinstance(x[0][0], str)]
        A(weave(m1 + m2, pre + oth + [(sm, 0, n-1)] + post + wvs))
    def p1(mask=None, last=False, extra=None, extra2=None, vm=9):
        slot(0, 0, 1, 1, kr=(VVC, 1), vr=0, sync=True, vm=vm)
        slot(1, 1, 0, 0, mask=mask, wk=8, wv=0, extra=extra)
        slot(0, 0, 1, 1, kr=(VKN, 0), vr=1)
        slot(1, 1, 0, 0, mask=None if mask is None else mask+1, wk=8, wv=(8 if last else 0), kr=(VKN, 1) if last else None, adv=True, extra=extra2)
    def p2(last=False):
        for t in range(2):
            fin = last and t == 1
            slot(0, 0, 0, 0, mask=2*t if last else None, kr=None if fin else (VKN, 0), vr=0, sync=True, wk=8, wv=0 if fin else 8, fix=True, extra=pre[1+t:2+t] if last else None)
            slot(0, 1, None if fin else 0, 0, mask=2*t+1 if last else None, kr=None if fin else (VKN, 1), vr=1, wk=None if fin else 8, wv=0 if fin else 8, adv=True, fix=True)
    A.stamp(16)
    A(f's_lshl_b32 s20, s27, 1\ns_cmp_eq_u32 s20, 0\ns_cbranch_scc1 {name}_p1e\n.p2align 3\n{name}_p1:')
    p1()
    A(f's_sub_u32 s20, s20, 1\ns_cmp_lg_u32 s20, 0\ns_cbranch_scc1 {name}_p1\n{name}_p1e:')
    A.stamp(17)
    p1(mask=0, extra=latec); p1(mask=2, last=True, vm=9+8)
    def finalize(X, T):
        A(f'v_mov_b32 v2, v{LA+X}\ns_nop 1\nv_permlane32_swap_b32 v{LA+X}, v2\ns_nop 1\nv_add_f32 v2, v{LA+X}, v2\nv_rcp_f32 v2, v2')
        A(f's_lshl_b32 s33, s{28+X}, 18\ns_lshl_b32 s21, s26, 13\ns_add_u32 s33, s33, s21\ns_add_u32 s33, s33, {WS_CTX}')
        for n in range(8):
            t = T + (n % 2) * 12
            for i in range(8): A(f'v_accvgpr_read_b32 v{t+i}, a{64*X+8*n+i}')
            for i in range(8): A(f'v_mul_f32 v{t+i}, v{t+i}, v2')
            for i in range(4): A(f'v_cvt_pk_bf16_f32 v{t+8+i}, v{t+2*i}, v{t+2*i+1}')
            if n == 4: A('s_add_u32 s33, s33, 4096')
            A(f'buffer_store_dwordx4 {v(t+8,4)}, v{VDM}, {s(SCT,4)}, s33 offen offset:{(n%4)*1024} sc1')
    A('s_nop 1', pv(1, 1), 's_nop 15')
    finalize(1, QR+32)
    for i in range(8): A(f'v_mov_b32 v{PR+8+i}, 0')
    A.stamp(18)
    A(f's_waitcnt lgkmcnt(0)\ns_sub_u32 s20, 7, s27\ns_lshl_b32 s20, s20, 1\ns_cmp_eq_u32 s20, 0\ns_cbranch_scc1 {name}_p2e\n.p2align 3\n{name}_p2:')
    p2()
    A(f's_sub_u32 s20, s20, 1\ns_cmp_lg_u32 s20, 0\ns_cbranch_scc1 {name}_p2\n{name}_p2e:')
    A.stamp(19)
    p2(last=True)
    A('s_waitcnt lgkmcnt(0)', pv(0, 1))
    A.stamp(20)
    A.mark('kz')
    finalize(0, SR)
    A.mark('cs')
    STUBS.extend(stubs)
    B = A; A = Asm()
    for X, par, fix in ((0, 0, 0), (1, 1, 0), (0, 0, 1), (0, 1, 1)):
        S = SR+16*par; S2 = SR+16*(par ^ 1)
        A(f'{name}_fix{X}{par}{fix}:\ns_nop 15')
        A(f'v_max3_f32 v2, v{S}, v{S+1}, v{S+2}')
        for i in range(3, 15, 2): A(f'v_max3_f32 v2, v2, v{S+i}, v{S+i+1}')
        A(f'v_max_f32 v2, v2, v{S+15}\nv_mov_b32 v3, v2\ns_nop 1\nv_permlane32_swap_b32 v2, v3\ns_nop 1\nv_max_f32 v2, v2, v3\nv_max_f32 v2, s{SFLR+X}, v2')
        for i in range(16): A(f'v_sub_f32 v{NM+16*X+i}, v{NM+16*X+i}, v2\nv_sub_f32 v{S+i}, v{S+i}, v2')
        if fix:
            for i in range(16): A(f'v_sub_f32 v{S2+i}, v{S2+i}, v2')
        A(f's_cmp_lg_u32 s{SFLR+X}, 0\ns_cbranch_scc1 {name}_fx{X}{par}{fix}')
        A(f'v_sub_f32 v3, 0, v2\nv_exp_f32 v3, v3\ns_nop 0\nv_mul_f32 v{LA+X}, v{LA+X}, v3')
        for i in range(0, 64, 2):
            A(f'v_accvgpr_read_b32 v4, a{64*X+i}\nv_accvgpr_read_b32 v5, a{64*X+i+1}\nv_mul_f32 v4, v4, v3\nv_mul_f32 v5, v5, v3')
            A(f'v_accvgpr_write_b32 a{64*X+i}, v4\nv_accvgpr_write_b32 a{64*X+i+1}, v5')
        A(f'{name}_fx{X}{par}{fix}:', softmax(par))
        A(f's_mov_b32 s{STHR+X}, {fl(4096.0)}\ns_mov_b32 s{SFLR+X}, 0\ns_setpc_b64 s[80:81]')
    STUBS.extend(A.L)
```

```python
from core import *
from m2 import SWO, SW1, SW2
from k3 import halfsum
def run_gemm(A, g, name, nslab, hook=None, st=None, fside={}, fpost={}):
    D, n = g.D, g.nvm(); NS = g.KS//g.G
    A(f's_waitcnt vmcnt(@{name}0@) lgkmcnt(0)\ns_barrier'); A.stamp(st)
    A(g.reads(0, 0, 0))
    if hook: A(hook(0, -1))
    for sl in range(D): g.slab(A, sl, zero=(sl == 0), tag=name, vm=f'@{name}{sl+1}@', side=hook and {ss: hook(sl, ss) for ss in range(NS)})
    A(f's_mov_b32 s20, {nslab//D - 2}\n.p2align 3\n{name}_l:')
    for sl in range(D): g.slab(A, sl, side=hook and {ss: hook(sl, ss) for ss in range(NS)})
    A(f's_sub_u32 s20, s20, 1\ns_cmp_lg_u32 s20, 0\ns_cbranch_scc1 {name}_l')
    for sl in range(D):
        g.slab(A, sl, loads=False, tail_loads=(sl == 0), vm=max(0, D-2-sl)*n, last=(sl == D-1),
               side={ss: hook(sl, ss, sl == D-1) for ss in range(NS)} if hook else fside.get(sl), post=fpost.get(sl))
def a_sets(A, g, name):
    for sl in range(4): A(g.a_load(sl, range(g.KS if sl < 3 else g.KS - g.G))); A.mark(f'{name}{sl}')
def wait_flags(A, name, soff, nfl):
    A(f'v_min_u32 v2, {nfl-1}, v1\nv_lshlrev_b32 v2, 2, v2\nv_add_u32 v251, s{soff}, v2')
    A(poll_load(250, 251), 's_waitcnt vmcnt(0)', poll_check(name+'_w', 250, 251, 1))

def thin_ids(A):
    if os.environ.get('MAP', '1') == '1':
        A('s_lshl_b32 s26, s24, 1\ns_and_b32 s27, s25, 1\ns_add_u32 s26, s26, s27\ns_lshr_b32 s27, s25, 1')
    else:
        A('s_and_b32 s26, s24, 3\ns_lshl_b32 s26, s26, 2\ns_and_b32 s27, s25, 3\ns_add_u32 s26, s26, s27')
        A('s_lshr_b32 s27, s24, 2\ns_lshl_b32 s27, s27, 3\ns_lshr_b32 s28, s25, 2\ns_add_u32 s27, s27, s28')
    A('s_lshl_b32 s28, s26, 2\ns_add_u32 s28, s28, s3')
def phase_thin(A, name, which, sig):
    o = which == 'o'; K = 4096 if o else 3584; SO = 40; sb = 21 if o else 28
    AC, WF, XR, C1, C2 = 16, 48, 112, 128, 160
    g = Gemm(MT=1, NT=2, G=4, KS=8, D=4, amode='fm', ldw=2048, acc=lambda mt, nt: v(AC+nt*16, 16), bfr=WF, afr=('a', 0),
             vB0=6, vB1=7, vD=8, vA=[12], sB=[SWO if o else SW2], sK=30, sWB=31, sA=SWS, sKA=32, bbase=0, trans=lambda nt: True, ncol=lambda n64: 0)
    pre, post = sig
    A(pre); thin_ids(A)
    g.setup_w(A, 1, 2, 3)
    A(f's_lshl_b32 s30, s27, 7\ns_mul_i32 s32, s28, {K*64}\ns_add_u32 s32, s32, {WS_CTX if o else WS_FF}\nv_lshlrev_b32 v12, 4, v1')
    A('s_waitcnt vmcnt(@kz@)\ns_barrier' if o else 's_barrier')
    for sl in range(4): A(g.w_dma(sl))
    A('v_lshrrev_b32 v13, 5, v1\nv_and_b32 v14, 31, v1\nv_lshlrev_b32 v15, 4, v13\ns_lshl_b32 s33, s27, 8')
    A('s_lshl_b32 s36, s28, 16\ns_lshl_b32 s37, s27, 7\ns_add_u32 s36, s36, s37')
    if o:
        A('v_lshlrev_b32 v3, 11, v14\nv_lshl_add_u32 v3, v13, 3, v3')
        for i in range(8): A(f'buffer_load_dwordx2 {v(XR+2*i,2)}, v3, {s(SX,4)}, s36 offen offset:{i*16}')
        A('v_lshlrev_b32 v2, 4, v0\nv_add_u32 v2, 131072, v2', [f'ds_read_b128 {v(16+4*j,4)}, v2 offset:{j*4096}' for j in range(8)], [f'v_accvgpr_read_b32 v{48+i}, a{160+i}' for i in range(8)])
        A('s_waitcnt lgkmcnt(0)', gemv(2, 8, 16, 48, 56, 65536))
        A(f's_lshl_b32 s35, s24, 5\ns_add_u32 s35, s35, s25\ns_lshl_b32 s35, s35, 6\ns_add_u32 s35, s35, {WS_MOD+8192}')
    else: srd(A, SO, 90, 0, 4*MB)
    A('s_waitcnt vmcnt(@cs@) lgkmcnt(0)\ns_barrier', post); A.stamp(sb)
    if o: A(fin(16, 16, 65536), 's_waitcnt lgkmcnt(0)', fin2(16, 16, 35, True), f's_lshl_b32 s34, s26, 7\ns_add_u32 s34, s34, {WS_FLG+F_C}')
    else: A(f's_lshr_b32 s34, s26, 1\ns_lshl_b32 s34, s34, 7\ns_add_u32 s34, s34, {WS_FLG+F_F}')
    wait_flags(A, name, 34, 32 if o else 28); A.stamp(sb+1)
    if o: A(f's_add_u32 s35, s2, {WS_FLG+F_M}', flag_store(35, 2, 'byte'))
    a_sets(A, g, name)
    cl = [f's_add_u32 s34, s33, {(2048 if o else 5120)*4}'] + [f'buffer_load_dwordx4 {v(C1+4*i,4)}, v15, {s(SWS,4)}, s34 offen offset:{i*32} sc1' for i in range(8)]
    if o:
        cl += [f's_add_u32 s34, s33, {4096*4}'] + [f'buffer_load_dwordx4 {v(C2+4*i,4)}, v15, {s(SWS,4)}, s34 offen offset:{i*32} sc1' for i in range(8)]
        mp = [['v_lshlrev_b32 v251, 2, v1', f'v_add_u32 v251, {WS_FLG+F_M}, v251', poll_load(250, 251)]]
        run_gemm(A, g, name, K//128, st=sb+2, fside={0: {0: mp}, 2: {1: cl}}, fpost={2: poll_check(name+'_m', 250, 251, '0x01010101')})
        A('s_waitcnt vmcnt(0)')
    else:
        A(cl); run_gemm(A, g, name, K//128, st=sb+2)
    if o: A.stamp(24)
    XF = WF
    if not o: A([f'v_accvgpr_read_b32 v{XR+i}, a{128+i}' for i in range(16)])
    for i in range(16): A(f'v_lshlrev_b32 v{XF+2*i}, 16, v{XR+i}\nv_and_b32 v{XF+2*i+1}, 0xffff0000, v{XR+i}')
    for i in range(32): A(f'v_fmac_f32 v{XF+i}, v{AC+i}, v{C1+i}')
    for i in range(16): A(f'v_cvt_pk_bf16_f32 v{XR+i}, v{XF+2*i}, v{XF+2*i+1}')
    if o:
        for i in range(16): A(f'v_lshlrev_b32 v{XF+2*i}, 16, v{XR+i}\nv_and_b32 v{XF+2*i+1}, 0xffff0000, v{XR+i}\nv_accvgpr_write_b32 a{128+i}, v{XR+i}')
        for i in range(32):
            A(f'v_add_f32 v{C2+i}, 1.0, v{C2+i}\nv_cvt_pk_bf16_f32 v{C2+i}, v{C2+i}, v{C2+i}\nv_and_b32 v{C2+i}, 0xffff0000, v{C2+i}\nv_mul_f32 v{C2+i}, v{C2+i}, v{XF+i}')
        for i in range(16): A(f'v_cvt_pk_bf16_f32 v{AC+i}, v{C2+2*i}, v{C2+2*i+1}')
        A(f's_lshl_b32 s36, s28, 16\ns_lshl_b32 s37, s27, 12\ns_add_u32 s36, s36, s37\ns_add_u32 s36, s36, {WS_X1G}')
        for i in range(4): A(f'buffer_store_dwordx4 {v(AC+4*i,4)}, v12, {s(SWS,4)}, s36 offen offset:{i*1024} sc1')
        A(f'v_add_f32 v2, v{XF}, v{XF+1}\nv_add_f32 v3, v{XF+2}, v{XF+3}')
        for i in range(4, 32): A(f'v_add_f32 v{2+(i&1)}, v{2+(i&1)}, v{XF+i}')
        A('v_add_f32 v2, v2, v3')
        halfsum(A, 2, 4)
        A(f'v_mul_f32 v2, {fl(1/64)}, v2')
        for i in range(32): A(f'v_sub_f32 v{XF+i}, v{XF+i}, v2')
        for i in range(32): A(f'{"v_mul_f32" if i < 2 else "v_fmac_f32"} v{3+(i&1)}, v{XF+i}, v{XF+i}')
        A('v_add_f32 v3, v3, v4')
        halfsum(A, 3, 4)
        A(f's_lshl_b32 s36, s28, 8\ns_lshl_b32 s37, s27, 14\ns_add_u32 s36, s36, s37\ns_add_u32 s36, s36, {WS_ST}\nv_lshlrev_b32 v4, 3, v14\nv_lshl_or_b32 v4, v13, 30, v4')
        A(f'buffer_store_dwordx2 v[2:3], v4, {s(SWS,4)}, s36 offen sc1'); A.mark('cs')
    else:
        A('v_lshlrev_b32 v3, 11, v14\nv_lshl_add_u32 v3, v13, 4, v3')
        for m in range(4):
            A(f'v_permlane32_swap_b32 v{XR+4*m}, v{XR+4*m+2}\nv_permlane32_swap_b32 v{XR+4*m+1}, v{XR+4*m+3}')
        for m in range(4): A(f'buffer_store_dwordx4 {v(XR+4*m,4)}, v3, {s(SO,4)}, s36 offen offset:{m*32}')

def sig_ctx():
    return (['s_lshl_b32 s38, s26, 2', f's_add_u32 s38, s38, {WS_FLG+F_C}', 's_lshl_b32 s39, s27, 7', 's_add_u32 s21, s38, 1920', 's_sub_u32 s21, s21, s39', 's_add_u32 s38, s38, s39', 's_mov_b32 s39, s21'],
            flag_store(38, 2) + [f'buffer_store_dword v3, v2, {s(SWS,4)}, s39 offen sc0 sc1'])

def phase_ffn1(A, name):
    AC, WF, AE, EF, WE, VE, VBE, RS = 16, 144, 208, 224, 232, 14, 15, 240
    EB, UB = 65536, 65536+4096
    g = Gemm(MT=2, NT=4, G=2, KS=4, D=4, amode='fm', ldw=7168, acc=lambda mt, nt: v(AC+(mt*4+nt)*16, 16), bfr=WF, afr=('a', 0),
             vB0=6, vB1=7, vD=8, vA=[12, 13], sB=[SW1, SW1], sK=30, sWB=31, sA=SWS, sKA=32, bbase=0, trans=lambda nt: True, ncol=lambda n64: n64*128)
    A(f's_lshl_b32 s38, s26, 6\ns_lshl_b32 s39, s27, 2\ns_add_u32 s38, s38, s39\ns_add_u32 s38, s38, {WS_FLG+F_X}')
    A(f's_cmp_lt_u32 s25, 28\ns_cbranch_scc1 {name}_go')
    A('s_waitcnt vmcnt(0)\ns_barrier', flag_store(38, 2), f's_mov_b32 s38, {OOB}\ns_branch {name}_skip\n{name}_go:')
    A('s_and_b32 s26, s24, 1\ns_lshl_b32 s26, s26, 2\ns_and_b32 s27, s25, 3\ns_add_u32 s26, s26, s27')
    A('s_lshr_b32 s27, s24, 1\ns_mul_i32 s27, s27, 7\ns_lshr_b32 s28, s25, 2\ns_add_u32 s27, s27, s28')
    A('s_lshl_b32 s28, s26, 3\ns_lshl_b32 s29, s3, 1\ns_add_u32 s28, s28, s29')
    A.mark('cs')
    g.setup_w(A, 1, 2, 3)
    A(f's_lshl_b32 s30, s27, 8\ns_lshl_b32 s32, s28, 16\ns_add_u32 s32, s32, {WS_X1G}\nv_lshlrev_b32 v12, 4, v1\nv_add_u32 v13, 65536, v12')
    A('s_barrier')
    for sl in range(4): A(g.w_dma(sl))
    A('v_bfe_u32 v2, v0, 1, 6\nv_lshlrev_b32 v2, 6, v2\nv_and_b32 v3, 1, v0\nv_lshl_add_u32 v2, v3, 4, v2\nv_lshrrev_b32 v3, 7, v0\nv_lshlrev_b32 v3, 12, v3\nv_sub_u32 v2, v2, v3')
    A(f'v_add_u32 v2, {4096*4}, v2\nbuffer_load_dwordx4 v[16:19], v2, {s(SWS,4)}, 0 offen sc1\nbuffer_load_dwordx4 v[20:23], v2, {s(SWS,4)}, 0 offen offset:32 sc1')
    A('s_waitcnt vmcnt(@cs@)\ns_barrier', flag_store(38, 2)); A.stamp(25)
    A(f's_lshl_b32 s34, s26, 7\ns_add_u32 s34, s34, {WS_FLG+F_X}')
    wait_flags(A, name, 34, 32)
    A(f'v_and_b32 v2, 31, v1\nv_lshlrev_b32 v2, 3, v2\nv_lshrrev_b32 v3, 5, v1\nv_lshl_add_u32 v2, v3, 17, v2\ns_lshl_b32 s33, s28, 8\ns_add_u32 s33, s33, {WS_ST}')
    for i in range(8):
        for mt in range(2): A(f'buffer_load_dwordx2 {v(32+16*mt+2*i,2)}, v2, {s(SWS,4)}, s33 offen offset:{mt*256} sc1')
        A('s_add_u32 s33, s33, 16384')
    A.mark('st')
    a_sets(A, g, name)
    A('v_cmp_gt_u32 vcc, 128, v0\nv_mov_b32 v3, 0\nv_mov_b32 v4, 1.0\nv_cndmask_b32 v3, v3, v4, vcc')
    for i in range(8): A(f'v_add_f32 v{16+i}, v{16+i}, v3')
    for i in range(4): A(f'v_cvt_pk_bf16_f32 v{24+i}, v{16+2*i}, v{17+2*i}')
    A(f'v_lshlrev_b32 v2, 4, v0\nv_add_u32 v2, {EB}, v2\nds_write_b128 v2, v[24:27]')
    A(f'v_and_b32 v2, 1, v1\nv_lshlrev_b32 v2, 11, v2\nv_lshrrev_b32 v3, 5, v1\nv_lshl_add_u32 v2, v3, 4, v2\nv_add_u32 v{VE}, {EB}, v2')
    A(f's_and_b32 s33, s3, 1\ns_lshl_b32 s33, s33, 6\nv_xor_b32 v{VBE}, s33, v6\ns_lshr_b32 s33, s3, 1\ns_lshl_b32 s33, s33, 10\nv_add_u32 v{VBE}, s33, v{VBE}')
    for r in range(16): A(f'v_mov_b32 v{AE+r}, 0')
    A('s_waitcnt vmcnt(@st@)')
    for mt in range(2):
        b = 32+16*mt
        A(f'v_add_f32 v2, v{b}, v{b+2}')
        for i in range(2, 8): A(f'v_add_f32 v2, v2, v{b+2*i}')
        halfsum(A, 2, 4)
        A(f'v_mul_f32 v2, {fl(1/16)}, v2')
        for i in range(8): A(f'v_sub_f32 v{b+2*i}, v{b+2*i}, v2')
        A(f'v_mul_f32 v3, v{b}, v{b}')
        for i in range(1, 8): A(f'v_fmac_f32 v3, v{b+2*i}, v{b+2*i}')
        A(f'v_mul_f32 v3, {fl(64.0)}, v3')
        for i in range(8): A(f'v_add_f32 v3, v3, v{b+2*i+1}')
        halfsum(A, 3, 4)
        A(f'v_mov_b32 v4, {fl(1e-5)}\nv_fmac_f32 v4, {fl(1/1024)}, v3\nv_rsq_f32 v4, v4\ns_nop 0')
        A(f'v_mov_b32 v{RS+2*mt}, v4\nv_mov_b32 v{RS+2*mt+1}, v4\nv_mul_f32 v4, v4, v2\nv_sub_f32 v{RS+4+2*mt}, 0, v4\nv_sub_f32 v{RS+5+2*mt}, 0, v4')
    def hook(sl, ss, last=False):
        o = []
        if ss >= 0: o += [mfma(v(AE, 16), v(WE+4*jj, 4), v(EF+4*jj, 4), v(AE, 16)) for jj in range(2)]
        nsl, nss = (sl, ss+1) if ss < 1 else ((sl+1) % 4, 0)
        if last and ss == 1: return o
        if ss == 1 and sl == 3: o.append(f'v_add_u32 v{VE}, 512, v{VE}')
        for jj in range(2):
            j = nss*2 + jj
            o.append(f'ds_read_b128 {v(EF+4*jj,4)}, v{VE} offset:{(nsl*4+j)*32}')
            for rd in range(2): o.append(f'ds_read_b64_tr_b16 {v(WE+4*jj+2*rd,2)}, v{VBE} offset:{nsl*16384 + (2*j+rd)*2048}')
        return o
    run_gemm(A, g, name, 16, hook=hook, st=26)
    A.stamp(27)
    A(f'v_and_b32 v2, 1, v1\nv_lshlrev_b32 v2, 9, v2\nv_lshrrev_b32 v3, 5, v1\nv_lshlrev_b32 v3, 6, v3\ns_lshl_b32 s33, s3, 7\nv_add3_u32 v2, v2, v3, s33\nv_add_u32 v2, {UB}, v2\nv_add_u32 v3, {UB}, v3')
    A('s_nop 7')
    for i in range(4): A(f'ds_write_b128 v2, {v(AE+4*i,4)} offset:{i*16}')
    A('s_waitcnt lgkmcnt(0)\ns_barrier')
    UT = WF
    for nt in range(2):
        for vec in range(2):
            for i in range(4): A(f'ds_read_b128 {v(UT+32*nt+16*vec+4*i,4)}, v3 offset:{vec*512+nt*128+i*16}')
    A(f's_mul_i32 s33, s28, {224*1024}\ns_lshl_b32 s34, s27, 13\ns_add_u32 s33, s33, s34\ns_add_u32 s33, s33, {WS_FF}\ns_add_u32 s34, s33, {224*1024}')
    for nt in range(4):
        u = UT+32*(nt & 1)
        A(f's_waitcnt lgkmcnt({8 if nt < 3 else 0})')
        for mt in range(2):
            ac = AC+(mt*4+nt)*16
            for i in range(0, 16, 2): A(f'v_pk_fma_f32 {v(AE+i,2)}, {v(u+i,2)}, {v(RS+4+2*mt,2)}, {v(u+16+i,2)}')
            for i in range(0, 16, 2): A(f'v_pk_fma_f32 {v(ac+i,2)}, {v(ac+i,2)}, {v(RS+2*mt,2)}, {v(AE+i,2)}')
            for i in range(8): A(f'v_cvt_pk_bf16_f32 v{ac+i}, v{ac+2*i}, v{ac+2*i+1}')
            for i in range(8): A(f'v_pk_max_i16 v{ac+i}, v{ac+i}, 0')
            if nt == 2 and mt == 0: A('s_add_u32 s33, s33, 4096\ns_add_u32 s34, s34, 4096')
            for h in range(2): A(f'buffer_store_dwordx4 {v(ac+4*h,4)}, v12, {s(SWS,4)}, s{33+mt} offen offset:{((2*nt+h) % 4)*1024} sc1')
        if nt < 2:
            for vec in range(2):
                for i in range(4): A(f'ds_read_b128 {v(u+16*vec+4*i,4)}, v3 offset:{vec*512+(nt+2)*128+i*16}')
    A(f's_lshl_b32 s38, s26, 7\ns_lshl_b32 s39, s27, 2\ns_add_u32 s38, s38, s39\ns_add_u32 s38, s38, {WS_FLG+F_F}')
    A(f'{name}_skip:'); A.mark('cs')
```

```python
import sys
from core import *
import m1, m2, m3
NAME = 'adaLN_cond__compressed_kv_cla__dense_activation_relu__prompt'
def build(path, diag=False):
    A = Asm(); A.diag = diag; K = NAME + '_kernel'
    header(A, K, 256)
    m1.phase_kv(A, 'kv'); m2.phase_attn(A, 'at')
    m3.phase_thin(A, 'op', 'o', m3.sig_ctx()); m3.phase_ffn1(A, 'f1'); m3.phase_thin(A, 'f2', 'f', ([], flag_store(38, 2)))
    A.dump(0, 31)
    A(f'{K}_end:\ns_endpgm'); A('kn_st:'); A(STUBS); A('kn_ce:')
    ref = open(f'cdna_kernels/{NAME}.s.ref').read().split('\n')
    head = [l for l in ref if l.startswith(';') and '@launch' not in l and 'Override' not in l and 'grid=ceil' not in l]
    head.append('; @launch grid=(256,1,1) block=(256,1,1) lds=163840')
    t = '\n'.join(head) + '\n.amdgcn_target "amdgcn-amd-amdhsa--gfx950"\n.text\n' + A.text()
    t += '.section .rodata,"a"\n.p2align 6\n' + kd(K)
    open(path, 'w').write(t)
if __name__ == '__main__':
    build(sys.argv[1] if len(sys.argv) > 1 else f'cdna_kernels/{NAME}.s', len(sys.argv) > 2)
```

```python
import struct, re, os
NT = ' nt' if os.environ.get('NT', '0') == '1' else ''
def f2u(x): return struct.unpack('<I', struct.pack('<f', x))[0]
def fl(x): return '0x%08x' % f2u(x)

MB = 1 << 20
WS_FLG = 512*1024
WS_PART = 64*1024
FS = 5
F_H, F_KV, F_C, F_X, F_F, F_M = [x << FS for x in (0, 1024, 2048, 4096, 5120, 6144)]
WS_MOD, WS_H, WS_K, WS_V, WS_CTX, WS_X1, WS_X1G, WS_ST, WS_FF = 0, 1*MB, 8*MB, 24*MB, 40*MB, 56*MB, 60*MB, 64*MB, 72*MB
KA = dict(x=0, ckv=8, wq=16, wuk=24, wuv=32, wo=40, w1=56, w2=64, c=72, wmod=80, out=88, dbg=96, ws=104)

def R(p, b, n=1):
    return f'{p}{b}' if n == 1 else f'{p}[{b}:{b+n-1}]'
def v(b, n=1): return R('v', b, n)
def a(b, n=1): return R('a', b, n)
def s(b, n=1): return R('s', b, n)

class Asm:
    def __init__(self): self.L = []
    def __call__(self, *xs):
        for x in xs:
            if isinstance(x, (list, tuple)): self(*x)
            else: self.L.extend(t.strip() for t in x.split('\n') if t.strip())
    diag = False; sv = 255
    def stamp(self, n):
        if self.diag: self(f's_memrealtime s[98:99]\ns_memtime s[100:101]\ns_waitcnt lgkmcnt(0)\nv_writelane_b32 v{self.sv}, s98, {n}\nv_writelane_b32 v{self.sv}, s100, {n+32}')
    def lstamp(self, top):
        if self.diag: self(f's_memrealtime s[98:99]\ns_memtime s[100:101]\ns_sub_u32 m0, {top}, s20\ns_waitcnt lgkmcnt(0)\nv_writelane_b32 v{self.sv}, s98, m0\ns_add_u32 m0, m0, 32\ns_nop 0\nv_writelane_b32 v{self.sv}, s100, m0')
    def dump(self, kid, n):
        if not self.diag: return
        self('s_waitcnt vmcnt(0)'); self.stamp(n)
        self(f's_getreg_b32 s98, hwreg(HW_REG_HW_ID)\ns_getreg_b32 s99, hwreg(HW_REG_XCC_ID)\ns_lshl_b32 s99, s99, 24\ns_and_b32 s98, s98, 0xffffff\ns_or_b32 s98, s98, s99\nv_writelane_b32 v{self.sv}, s98, 32')
        self(f's_add_u32 s40, s22, {96*MB}\ns_addc_u32 s41, s23, 0\ns_and_b32 s41, s41, 0xffff\ns_mov_b32 s42, {4*MB}\ns_mov_b32 s43, 0x20000')
        self(f's_lshl_b32 s44, s2, 10\ns_lshl_b32 s45, s3, 8\ns_add_u32 s44, s44, s45\ns_add_u32 s44, s44, {kid*262144}\nv_and_b32 v2, 63, v0\nv_lshlrev_b32 v2, 2, v2')
        self(f'buffer_store_dword v{self.sv}, v2, s[40:43], s44 offen')
    def mark(self, n): self.L.append(f';@mark {n}')
    def resolve(self):
        cnt = {}; out = []
        for l in self.L:
            if l.startswith(';@mark '): cnt[l[7:]] = 0; continue
            if l == ';@uncount':
                for k in cnt: cnt[k] -= 1
                continue
            if l.startswith('buffer_') or l.startswith('global_'):
                for k in cnt: cnt[k] += 1
            m = re.search(r'@(\w+)@', l)
            if m:
                assert cnt[m.group(1)] < 64, (l, cnt[m.group(1)])
                l = l.replace(m.group(0), str(cnt[m.group(1)]))
            out.append(l)
        self.L = out
    def text(self):
        self.resolve()
        return '\n'.join(('' if l.endswith(':') or l.startswith('.') else '  ') + l for l in self.L) + '\n'

def weave(mf, streams):
    n = len(mf); gaps = [[] for _ in range(n)]
    for items, g0, g1 in streams:
        k = len(items); g1 = min(g1, n-1); w = g1 - g0 + 1
        for i, it in enumerate(items):
            gaps[g0 + (i * w) // k].append(it)
    out = []
    for m, g in zip(mf, gaps):
        out.append(m); out.extend(g)
    return out

def srd(A, d, ptr, off, size, back=0):
    o = off - back
    if o >= 0:
        A(f's_add_u32 s{d}, s{ptr}, {o}\ns_addc_u32 s{d+1}, s{ptr+1}, 0')
    else:
        A(f's_sub_u32 s{d}, s{ptr}, {-o}\ns_subb_u32 s{d+1}, s{ptr+1}, 0')
    A(f's_and_b32 s{d+1}, s{d+1}, 0xffff\ns_mov_b32 s{d+2}, {size+back}\ns_mov_b32 s{d+3}, 0x20000')

def header(A, name, nwg):
    A(f'.globl {name}\n.p2align 8\n.type {name},@function\n{name}:')
    A(f's_cmp_ge_u32 s2, {nwg}\ns_cbranch_scc1 {name}_end')
    if A.diag: A(f'v_mov_b32 v{A.sv}, 0')
    A.stamp(0)

def kd(name, nv=512, acc=256):
    return f'''.amdhsa_kernel {name}
  .amdhsa_next_free_vgpr {nv}
  .amdhsa_next_free_sgpr 102
  .amdhsa_accum_offset {acc}
  .amdhsa_group_segment_fixed_size 0
  .amdhsa_kernarg_size 112
  .amdhsa_user_sgpr_count 2
  .amdhsa_user_sgpr_kernarg_segment_ptr 1
  .amdhsa_system_sgpr_workgroup_id_x 1
.end_amdhsa_kernel
'''

def mfma(d, x, y, c):
    return f'v_mfma_f32_32x32x16_bf16 {d}, {x}, {y}, {c}'

class Gemm:
    def __init__(g, **k): g.__dict__.update(k)
    wnt = ''
    def ppw(g): return g.KS * g.NT // 4
    def stage_bytes(g): return g.KS * g.NT * 1024
    def setup_w(g, A, vl, vt, sw, colbytes_sgpr=None):
        NH = g.NT // 2
        A(f'v_bfe_u32 v{vt}, v{vl}, 2, 2')
        A(f'v_lshlrev_b32 v{g.vB0}, 7, v{vt}')
        A(f'v_bfe_u32 v{vt}, v{vl}, 3, 1\nv_lshl_add_u32 v{g.vB0}, v{vt}, 6, v{g.vB0}')
        A(f'v_bfe_u32 v{vt}, v{vl}, 4, 1\nv_lshl_add_u32 v{g.vB0}, v{vt}, 5, v{g.vB0}')
        A(f'v_and_b32 v{vt}, 3, v{vl}\nv_lshl_add_u32 v{g.vB0}, v{vt}, 3, v{g.vB0}')
        A(f'v_lshrrev_b32 v{vt}, 5, v{vl}')
        A(f'v_mul_u32_u24 v{vt}, {512 if g.amode=="fm" else NH*1024}, v{vt}\nv_add_u32 v{g.vB0}, v{g.vB0}, v{vt}')
        if g.bbase: A(f'v_add_u32 v{g.vB0}, {g.bbase}, v{g.vB0}')
        A(f'v_xor_b32 v{g.vB1}, 64, v{g.vB0}')
        A(f'v_lshrrev_b32 v{vt}, 3, v{vl}\nv_mul_u32_u24 v{vt}, {g.ldw}, v{vt}')
        A(f'v_bfe_u32 v{vt+1}, v{vl}, 4, 1\nv_lshlrev_b32 v{vt+1}, 2, v{vt+1}\nv_and_b32 v{vt+2}, 7, v{vl}\nv_xor_b32 v{vt+1}, v{vt+1}, v{vt+2}')
        A(f'v_lshl_add_u32 v{vt}, v{vt+1}, 4, v{vt}')
        P = g.ppw()
        rows_per_wave = (P // NH) * 8
        A(f's_mul_i32 s{g.sWB}, s{sw}, {rows_per_wave*g.ldw}\nv_add_u32 v{vt}, s{g.sWB}, v{vt}')
        for i in range(P):
            kr, n64 = i // NH, i % NH
            A(f'v_add_u32 v{g.vD+i}, {4096 + kr*8*g.ldw + g.ncol(n64) - (i%4)*1024}, v{vt}')
        A(f's_mul_i32 s{g.sWB}, s{sw}, {P*1024}\ns_add_u32 s{g.sWB}, s{g.sWB}, {g.bbase}')
    def w_dma(g, st):
        NH = g.NT // 2; out = []
        for i in range(g.ppw()):
            it = []
            if i % 4 == 0: it += [f's_add_u32 m0, s{g.sWB}, {st*g.stage_bytes() + (i//4)*4096}', 's_nop 0']
            it.append(f'buffer_load_dwordx4 v{g.vD+i}, {s(g.sB[i%NH],4)}, s{g.sK} offen offset:{(i%4)*1024}{g.wnt} lds')
            out.append(it)
        out.append([f's_add_u32 s{g.sK}, s{g.sK}, {g.KS*16*g.ldw}'])
        return out
    def afrag(g, slot, j, mt):
        p, b = g.afr
        if g.amode == 'fm': return R(p, b + ((slot * g.KS + j) * g.MT + mt) * 4, 4)
        return R(p, b + (slot * g.MT + mt) * 4, 4)
    def a_load(g, slot, js):
        out = []
        for j in js:
            for mt in range(g.MT):
                it = []
                if j % 4 == 0 and j > 0 and mt == 0: it.append(f's_add_u32 s{g.sKA}, s{g.sKA}, 4096')
                it.append(f'buffer_load_dwordx4 {g.afrag(slot,j,mt)}, v{g.vA[mt]}, {s(g.sA,4)}, s{g.sKA} offen offset:{(j%4)*1024} sc1')
                if j == g.KS-1 and mt == g.MT-1: it.append(f's_add_u32 s{g.sKA}, s{g.sKA}, 4096')
                out.append(it)
        return out
    def a_dma(g, st):
        out = []
        for i in range(8):
            it = []
            if i % 4 == 0: it += [f's_add_u32 m0, s{g.sWA}, {st*32768 + (i//4)*4096}', 's_nop 0']
            it.append(f'buffer_load_dwordx4 v{g.vAD+i}, {s(g.sA,4)}, s{g.sKA} offen offset:{(i%4)*1024} lds')
            out.append(it)
        out.append([f's_add_u32 s{g.sKA}, s{g.sKA}, 128'])
        return out
    def nvm(g):
        return g.ppw() + (g.KS * g.MT if g.amode == 'fm' else 8)
    def wfrag(g, par, jj, nt): return g.bfr + ((par * g.G + jj) * g.NT + nt) * 4
    def reads(g, st, ss, par):
        NH = g.NT // 2; out = []
        for jj in range(g.G):
            j = ss * g.G + jj
            if g.amode == 'lds':
                for mt in range(g.MT):
                    out.append(f'ds_read_b128 {g.afrag(par,0,mt)}, v{g.vAR+j} offset:{st*32768 + mt*4096}')
            for nt in range(g.NT):
                r = g.wfrag(par, jj, nt); va = g.vB1 if nt & 1 else g.vB0
                for rd in range(2):
                    if g.amode == 'fm': o = (2*j + rd) * NH * 1024
                    else: o = 2*j * NH * 1024 + rd * 512
                    o += st * g.stage_bytes() + (nt >> 1) * 1024
                    assert o < 65536
                    out.append(f'ds_read_b64_tr_b16 {v(r+2*rd,2)}, v{va} offset:{o}')
        return out
    def mfmas(g, slot, ss, par, zero=False):
        out = []
        for jj in range(g.G):
            j = ss * g.G + jj
            for nt in range(g.NT):
                for mt in range(g.MT):
                    x = g.afrag(slot, j, mt) if g.amode == 'fm' else g.afrag(par, 0, mt)
                    w = v(g.wfrag(par, jj, nt), 4); d = g.acc(mt, nt)
                    c = '0' if (zero and jj == 0) else d
                    out.append(mfma(d, w, x, c) if g.trans(nt) else mfma(d, x, w, c))
        return out
    def issue_set(g, slot):
        return (g.a_load(slot, range(g.KS)) if g.amode == 'fm' else g.a_dma(slot)) + g.w_dma(slot)
    def slab(g, A, sl, first=False, loads=True, tail_loads=True, last=False, vm=None, side=None, tag='set', post=None, zero=False):
        D = g.D; st = sl % D; NS = g.KS // g.G; n = g.G * g.NT * g.MT
        side = side or {}
        for ss in range(NS):
            par = (sl * NS + ss) & 1
            lastss = ss == NS - 1
            streams = []
            if lastss and not last:
                A(f's_waitcnt vmcnt({(D-2)*g.nvm() if vm is None else vm}) lgkmcnt(0)\ns_barrier')
                if post: A(post)
                streams.append((g.reads((sl+1) % D, 0, par ^ 1), 0, max(0, n*3//4-1)))
                if loads:
                    if g.amode == 'fm':
                        streams.append((g.w_dma(st) + g.a_load(st, range(g.KS - g.G)), 0, n-1))
                    else:
                        streams.append((g.w_dma(st) + g.a_dma(st) + [f';@mark {tag}{sl+D}'], 0, n-1))
            else:
                A('s_waitcnt lgkmcnt(0)')
                if not lastss: streams.append((g.reads(st, ss+1, par ^ 1), 0, max(0, n*3//4-1)))
            if ss == 0 and tail_loads and g.amode == 'fm' and not first:
                streams.append((g.a_load((sl-1) % D, range(g.KS - g.G, g.KS)) + [f';@mark {tag}{sl-1+D}'], 0, n//2))
            if ss in side: streams.append((side[ss], 0, n-1))
            A(weave(g.mfmas(st, ss, par, zero=((first or zero) and ss == 0)), streams))

SWS, SX = 68, 60
OOB = 0x7f000000
STUBS = []
SPIN = 400000
def poll_load(vd, va, sr=SWS): return f'buffer_load_dword v{vd}, v{va}, {s(sr,4)}, 0 offen sc1'
def poll_check(name, vd, va, exp, sr=SWS):
    STUBS.append(f'{name}_sp:\n{poll_load(vd, va, sr)}\ns_waitcnt vmcnt(0)\nv_cmp_ne_u32 vcc, {exp}, v{vd}\ns_add_u32 s97, s97, 1\ns_cmp_gt_u32 s97, {SPIN}\ns_cbranch_scc1 {name}_ok\ns_cbranch_vccnz {name}_sp\ns_branch {name}_ok')
    return [f'v_cmp_ne_u32 vcc, {exp}, v{vd}', f's_cbranch_vccnz {name}_sp', f'{name}_ok:']
def flag_store(soff, t, op='dword', sr=SWS, who='v0'):
    return [f'v_cmp_eq_u32 vcc, 0, {who}', f'v_mov_b32 v{t}, {OOB}', f'v_mov_b32 v{t+1}, 1', f'v_cndmask_b32 v{t}, v{t}, {who}, vcc',
            f'buffer_store_{op} v{t+1}, v{t}, {s(sr,4)}, s{soff} offen sc0 sc1']
CPF = int(os.environ.get('CPF', '1'))
def codepf(lab, d, n=4, t=2, st=21):
    if not CPF: return []
    return [[f'v_and_b32 v{t}, {n-1}, v0', f'v_lshlrev_b32 v{t}, 7, v{t}', f's_mul_i32 s{st}, s25, {n*128}', f's_add_u32 s{st}, s{st}, {lab}-kn_cb',
             f'v_add_u32 v{t}, s{st}, v{t}', f'v_min_u32 v{t}, kn_ce-kn_cb-4, v{t}', f'global_load_dword v{d}, v{t}, s[0:1]']]
def q(l, i, n): return l[len(l)*i//n: len(l)*(i+1)//n]

LOG2E = 1.4426950408889634
def silu(c):
    return [f'v_lshlrev_b32 v{c}, 16, v{c}', f'v_mul_f32 v2, {fl(-LOG2E)}, v{c}', 'v_exp_f32 v2, v2', 's_nop 0', 'v_add_f32 v2, 1.0, v2',
            'v_rcp_f32 v2, v2', 's_nop 0', f'v_mul_f32 v{c}, v{c}, v2', f'v_cvt_pk_bf16_f32 v{c}, v{c}, v{c}', f'v_and_b32 v{c}, 0xffff0000, v{c}']
def gemv(LPR, J, GD, GC, GA, lds):
    o = []
    for j in range(J):
        o += silu(GC+j)
        for i in range(4):
            d = GD + 4*j + i; op = 'v_mul_f32' if j == 0 else 'v_fmac_f32'
            o += [f'v_lshlrev_b32 v2, 16, v{d}', f'v_and_b32 v3, 0xffff0000, v{d}', f'{op} v{GA+2*i}, v2, v{GC+j}', f'{op} v{GA+2*i+1}, v3, v{GC+j}']
    sh = LPR
    while sh < 16: o += [f'v_add_f32_dpp v{GA+i}, v{GA+i}, v{GA+i} row_ror:{sh} row_mask:0xf bank_mask:0xf' for i in range(8)]; sh *= 2
    o += ['v_lshrrev_b32 v2, 4, v0', f'v_and_b32 v3, {LPR-1}, v0', f'v_mul_u32_u24 v2, {32*LPR}, v2', 'v_lshl_add_u32 v2, v3, 5, v2', f'v_add_u32 v2, {lds}, v2']
    return o + [f'ds_write_b128 v2, {v(GA,4)}', f'ds_write_b128 v2, {v(GA+4,4)} offset:16']
def fin(N, GD, lds): return ['v_lshlrev_b32 v2, 2, v1', f'v_add_u32 v2, {lds}, v2'] + [f'ds_read_b32 v{GD+i}, v2 offset:{i*4*N}' for i in range(16)]
def fin2(N, GD, soff, rnd):
    o = [f'v_add_f32 v{GD+(i&1)}, v{GD+(i&1)}, v{GD+i}' for i in range(2, 16)] + [f'v_add_f32 v{GD}, v{GD}, v{GD+1}']
    if rnd: o += [f'v_cvt_pk_bf16_f32 v{GD}, v{GD}, v{GD}', f'v_and_b32 v{GD}, 0xffff0000, v{GD}']
    return o + ['v_lshlrev_b32 v2, 2, v0', f'v_cmp_gt_u32 vcc, {N}, v0', f'v_mov_b32 v3, {OOB}', 's_nop 0',
                'v_cndmask_b32 v2, v3, v2, vcc', f'buffer_store_dword v{GD}, v2, {s(SWS,4)}, s{soff} offen sc0 sc1']
```

```python
from core import *
from k1 import allreduce, bf16_round, LOG2E, QSCALE
SWQ = 72
def kv_store(mt, nt, h, t):
    ab = (mt*8+nt)*16 + 8*h
    off = WS_K + mt*8192 + (2*nt+h)*1024 if nt < 4 else WS_V + mt*8192 + h*4096 + (nt-4)*1024
    return ([f'v_accvgpr_read_b32 v{t+i}, a{ab+i}' for i in range(8)] + [f'v_cvt_pk_bf16_f32 v{t+8+i}, v{t+2*i}, v{t+2*i+1}' for i in range(4)] +
            [[f's_add_u32 s37, s36, {off}', f'buffer_store_dwordx4 {v(t+8,4)}, v5, {s(SWS,4)}, s37 offen sc1']])

def kv_off(mt, nt, h): return WS_K + mt*8192 + (2*nt+h)*1024 if nt < 4 else WS_V + mt*8192 + h*4096 + (nt-4)*1024
def kv_pack(mt, nt, h, t, d):
    ab = (mt*8+nt)*16 + 8*h
    return [f'v_accvgpr_read_b32 v{t+i}, a{ab+i}' for i in range(8)] + [f'v_cvt_pk_bf16_f32 v{d+i}, v{t+2*i}, v{t+2*i+1}' for i in range(4)]
def kv_put(mt, nt, h, d): return [[f's_add_u32 s37, s36, {kv_off(mt, nt, h)}', f'buffer_store_dwordx4 {v(d,4)}, v5, {s(SWS,4)}, s37 offen sc1']]
def phase_kv(A, name):
    A('s_load_dwordx16 s[4:19], s[0:1], 0\ns_load_dwordx8 s[84:91], s[0:1], 64\ns_load_dwordx4 s[92:95], s[0:1], 96')
    A('v_and_b32 v1, 63, v0\nv_lshrrev_b32 v2, 6, v0\ns_nop 0\nv_readfirstlane_b32 s3, v2')
    A('s_and_b32 s24, s2, 7\ns_lshr_b32 s25, s2, 3')
    A('s_and_b32 s26, s25, 3\ns_lshl_b32 s27, s24, 2\ns_add_u32 s26, s26, s27')
    A('s_lshr_b32 s27, s25, 2')
    A('s_lshl_b32 s28, s24, 5\ns_add_u32 s28, s28, s25')
    A('s_waitcnt lgkmcnt(0)\ns_mov_b32 s22, s94\ns_mov_b32 s23, s95\ns_mov_b32 s97, 0')
    SUK, SUV, SCK, SWM, SC, SDB = 40, 44, 48, 52, 56, 64
    srd(A, SWS, 22, 0, 96*MB); srd(A, SWM, 88, 0, 1024*6144*2); srd(A, SC, 86, 0, 2048)
    GD, GC, GA, XR, XF, CO = 160, 224, 228, 144, 192, 32
    srd(A, SUK, 10, 0, 4*MB, 4096); srd(A, SUV, 12, 0, 4*MB, 4096); srd(A, SCK, 6, 0, 2*MB)
    A('s_getpc_b64 s[0:1]\nkn_cb:', codepf('kn_cb', 29, 32))
    A(f'v_lshlrev_b32 v31, 10, v1\ns_lshl_b32 s21, s25, 16\ns_lshl_b32 s34, s3, 7\ns_add_u32 s21, s21, s34\nbuffer_load_dword v29, v31, {s(SCK,4)}, s21 offen')
    A('v_lshrrev_b32 v2, 4, v1\nv_lshlrev_b32 v2, 19, v2\nv_bfe_u32 v3, v1, 3, 1\nv_lshl_add_u32 v2, v3, 13, v2\nv_and_b32 v3, 7, v1\nv_lshl_add_u32 v2, v3, 7, v2')
    A('s_and_b32 s34, s3, 1\ns_lshl_b32 s34, s34, 21\ns_lshl_b32 s35, s25, 14\ns_add_u32 s34, s34, s35\ns_lshl_b32 s35, s24, 10\ns_add_u32 s34, s34, s35\ns_add_u32 s34, s34, 4096')
    A(f's_cmp_lt_u32 s3, 2\ns_cbranch_scc1 {name}_pk\nbuffer_load_dword v29, v2, {s(SUV,4)}, s34 offen{NT}\ns_branch {name}_pv\n{name}_pk:\nbuffer_load_dword v29, v2, {s(SUK,4)}, s34 offen{NT}\n{name}_pv:')
    A(f'v_cmp_gt_u32 vcc, 8, v0\nv_mov_b32 v3, {OOB}\nv_lshlrev_b32 v2, {2+FS}, v0\nv_cndmask_b32 v2, v3, v2, vcc\nv_mov_b32 v3, 0')
    A(f's_lshl_b32 s34, s2, {5+FS}\ns_add_u32 s34, s34, {WS_FLG}\nbuffer_store_dword v3, v2, {s(SWS,4)}, s34 offen sc0 sc1')
    A('s_and_b32 s29, s28, 3\ns_lshl_b32 s34, s29, 9\nv_lshrrev_b32 v3, 2, v0\nv_lshlrev_b32 v2, 1, v3\nv_mul_u32_u24 v3, 12288, v3\nv_and_b32 v4, 3, v0\nv_lshl_add_u32 v3, v4, 4, v3')
    for j in range(4): A(f'buffer_load_ushort v{GC+j}, v2, {s(SC,4)}, s34 offen offset:{j*128}')
    A(f's_mul_i32 s34, s29, {256*12288}\ns_lshr_b32 s35, s28, 2\ns_lshl_b32 s35, s35, 6\ns_add_u32 s34, s34, s35')
    for j in range(4): A(f'buffer_load_dwordx4 {v(GD+4*j,4)}, v3, {s(SWM,4)}, s34 offen{NT}\ns_add_u32 s34, s34, {64*12288}')
    A.mark('wm')
    A(f's_lshl_b32 s29, s29, 13\ns_lshl_b32 s35, s35, 1\ns_add_u32 s29, s29, s35\ns_add_u32 s29, s29, {WS_PART}')
    g = Gemm(MT=2, NT=8, G=1, KS=4, D=2, amode='lds', ldw=8192, acc=lambda mt, nt: a((mt*8+nt)*16, 16), bfr=64, afr=('v', 128),
             vB0=6, vB1=7, vD=8, vAD=16, vAR=24, sB=[SUK, SUK, SUV, SUV], sK=30, sWB=31, sA=SCK, sKA=32, sWA=33, bbase=65536,
             trans=lambda nt: nt < 4, ncol=lambda n64: (n64 & 1)*128)
    g.wnt = NT
    g.setup_w(A, 1, 2, 3)
    A('s_lshl_b32 s30, s26, 8')
    A('v_lshrrev_b32 v2, 3, v1\nv_lshlrev_b32 v2, 10, v2\nv_lshrrev_b32 v3, 4, v1\nv_and_b32 v4, 7, v1')
    A('v_xor_b32 v5, v3, v4\nv_lshl_add_u32 v16, v5, 4, v2\nv_xor_b32 v5, 4, v5\nv_lshl_add_u32 v17, v5, 4, v2')
    for i in range(7, 0, -1): A(f'v_add_u32 v{16+i}, {i*8192 - (i%4)*1024}, v{16+(i&1)}')
    A('s_lshl_b32 s32, s27, 18\ns_lshl_b32 s33, s3, 16\ns_add_u32 s32, s32, s33\ns_lshl_b32 s33, s3, 13')
    A(g.issue_set(0)); A.mark('kv0')
    A('v_and_b32 v2, 31, v1\nv_lshlrev_b32 v3, 7, v2\nv_add_u32 v3, s33, v3\nv_bfe_u32 v2, v1, 1, 3\nv_lshrrev_b32 v4, 5, v1\nv_xor_b32 v2, v2, v4')
    for j in range(4): A(f'v_xor_b32 v4, {2*j}, v2\nv_lshl_add_u32 v{24+j}, v4, 4, v3')
    srd(A, SX, 4, 0, 4*MB); srd(A, SDB, 92, 0, 256); srd(A, SWQ, 8, 0, 8*MB, 4096)
    A('s_lshl_b32 s35, s28, 3\ns_lshl_b32 s36, s3, 1\ns_add_u32 s35, s35, s36')
    A('v_lshlrev_b32 v28, 5, v1\nv_lshlrev_b32 v5, 4, v1')
    pre1 = [['s_add_u32 s21, s21, 512', f'buffer_load_dword v29, v31, {s(SCK,4)}, s21 offen']]
    xl = [['s_lshl_b32 s34, s35, 11'] + [f'buffer_load_dwordx4 {v(XR+8*r+4*h,4)}, v28, {s(SX,4)}, s34 offen offset:{r*2048+h*16}' for r in range(2) for h in range(2)]]
    preq = [['v_lshrrev_b32 v252, 3, v0', 'v_lshlrev_b32 v252, 13, v252', 'v_and_b32 v253, 7, v0', 'v_lshl_add_u32 v252, v253, 7, v252'],
            ['s_lshl_b32 s34, s25, 18', 's_lshl_b32 s36, s24, 10', 's_add_u32 s34, s34, s36', 's_add_u32 s34, s34, 4096', f'buffer_load_dword v29, v252, {s(SWQ,4)}, s34 offen{NT}']]
    T = 244
    ln1 = []
    for r in range(2):
        for i in range(8): ln1 += [f'v_lshlrev_b32 v{XF+16*r+2*i}, 16, v{XR+8*r+i}', f'v_and_b32 v{XF+16*r+2*i+1}, 0xffff0000, v{XR+8*r+i}']
    for i in range(1, 16):
        for r in range(2): ln1.append(f'v_add_f32 v{T+r}, v{XF+16*r+i}, v{(XF+16*r) if i == 1 else T+r}')
    ln1 += allreduce([T, T+1], [T+2, T+3])
    for r in range(2): ln1.append(f'v_mul_f32 v{T+r}, {fl(1/1024)}, v{T+r}')
    for i in range(16):
        for r in range(2): ln1.append(f'v_sub_f32 v{XF+16*r+i}, v{XF+16*r+i}, v{T+r}')
    for i in range(16):
        for r in range(2): ln1.append(f'{"v_mul_f32" if i == 0 else "v_fmac_f32"} v{T+4+r}, v{XF+16*r+i}, v{XF+16*r+i}')
    ln1 += allreduce([T+4, T+5], [T+2, T+3])
    ln1 += [f'v_mov_b32 v{T}, {fl(1e-5)}', f'v_mov_b32 v{T+1}, {fl(1e-5)}', f'v_fmac_f32 v{T}, {fl(1/1024)}, v{T+4}', f'v_fmac_f32 v{T+1}, {fl(1/1024)}, v{T+5}',
            f'v_rsq_f32 v{T}, v{T}', f'v_rsq_f32 v{T+1}, v{T+1}', 's_nop 0']
    for i in range(16):
        for r in range(2): ln1.append(f'v_mul_f32 v{XF+16*r+i}, v{XF+16*r+i}, v{T+r}')
    E, CF, HS = 131072, 133120, 141312
    msig = [['s_waitcnt vmcnt(@ms@)'] + flag_store(2, 252, 'byte', SDB)]
    mpoll = [['v_lshlrev_b32 v31, 2, v1', poll_load(250, 31, SDB), ';@mark mp']]
    mchk = [['s_waitcnt vmcnt(@mp@)'] + poll_check(name+'_m', 250, 31, '0x01010101', SDB), ['v_lshlrev_b32 v2, 5, v0', f's_mov_b32 s34, {WS_PART}']]
    for k in range(4): mchk += [f'buffer_load_dwordx4 {v(CO+8*k,4)}, v2, {s(SWS,4)}, s34 offen sc1', [f'buffer_load_dwordx4 {v(CO+8*k+4,4)}, v2, {s(SWS,4)}, s34 offen offset:16 sc1', 's_add_u32 s34, s34, 8192']]
    csum = ['s_waitcnt vmcnt(@co@)', ['s_cmp_ge_u32 s3, 2', 's_cselect_b32 s34, 1.0, 0']]
    for k in range(1, 4): csum += [f'v_add_f32 v{CO+i}, v{CO+i}, v{CO+8*k+i}' for i in range(8)]
    for op in ('v_cvt_pk_bf16_f32 @, @, @', 'v_and_b32 @, 0xffff0000, @', 'v_add_f32 @, s34, @', 'v_cvt_pk_bf16_f32 @, @, @', 'v_and_b32 @, 0xffff0000, @', f'v_mul_f32 @, {fl(QSCALE)}, @'):
        csum += [op.replace('@', f'v{CO+i}') for i in range(8)]
    csum += ['v_lshlrev_b32 v2, 5, v0', f'v_add_u32 v2, {CF}, v2', f'ds_write_b128 v2, {v(CO,4)}', f'ds_write_b128 v2, {v(CO+4,4)} offset:16']
    crd = ['v_lshlrev_b32 v2, 6, v1', f'v_add_u32 v2, {CF}, v2'] + [f'ds_read_b128 {v(CO+16*k+4*i,4)}, v2 offset:{k*4096+i*16}' for k in range(2) for i in range(4)]
    app = []
    for r in range(2):
        app += [f'v_fma_f32 v{XF+16*r+i}, v{XF+16*r+i}, v{CO+16+i}, v{CO+i}' for i in range(16)]
        for gg in range(2): app += [f'v_cvt_pk_bf16_f32 v{XR+8*r+4*gg+i}, v{XF+16*r+f}, v{XF+16*r+f+1}' for i, f in enumerate((4*gg, 4*gg+2, 8+4*gg, 10+4*gg))]
    app += [['s_lshl_b32 s34, s3, 1', 'v_and_b32 v3, 15, v1', 'v_lshlrev_b32 v2, 8, v1'], 'v_xor_b32 v3, s34, v3', f'v_add_u32 v2, {HS}, v2']
    for r in range(2):
        for gg in range(2): app += [f'v_xor_b32 v4, {gg*8+r}, v3', 'v_lshl_add_u32 v4, v4, 4, v2', f'ds_write_b128 v4, {v(XR+8*r+4*gg,4)}']
    hrd = ['v_lshrrev_b32 v2, 4, v0', 'v_xor_b32 v2, v2, v0', 'v_lshlrev_b32 v2, 4, v2', f'v_add_u32 v2, {HS}, v2'] + [f'ds_read_b128 {v(XR+4*i,4)}, v2 offset:{i*4096}' for i in range(4)]
    hst = [['s_lshr_b32 s36, s28, 2', 's_lshl_b32 s36, s36, 16', 's_and_b32 s37, s28, 3', 's_lshl_b32 s37, s37, 7'], ['s_add_u32 s36, s36, s37', f's_add_u32 s36, s36, {WS_H}'],
           ['v_lshrrev_b32 v2, 3, v0', 'v_lshlrev_b32 v2, 9, v2', 'v_and_b32 v3, 7, v0', 'v_lshl_add_u32 v2, v3, 4, v2']]
    hst += [[f'buffer_store_dwordx4 {v(XR+4*i,4)}, v2, {s(SWS,4)}, s36 offen sc1', 's_add_u32 s36, s36, 16384'] for i in range(4)] + [';@mark hs']
    hsig = [['s_lshr_b32 s36, s28, 2', f's_lshl_b32 s36, s36, {2+FS}', 's_and_b32 s37, s28, 3', 's_add_u32 s36, s36, s37', f's_add_u32 s36, s36, {WS_FLG+F_H}'] + flag_store(36, 2, 'byte')]
    hpoll = [['s_sub_u32 s28, 15, s27', 's_lshl_b32 s28, s28, 2', 's_add_u32 s28, s28, s3', 's_lshl_b32 s29, s27, 2', 's_add_u32 s29, s29, s3'],
             ['v_mov_b32 v2, s28', 'v_mov_b32 v3, s29', 'v_and_b32 v4, 1, v1', 'v_cmp_eq_u32 vcc, 0, v4', 's_nop 1'],
             ['v_cndmask_b32 v2, v3, v2, vcc', f'v_lshlrev_b32 v2, {2+FS}, v2', f'v_add_u32 v251, {WS_FLG+F_H}, v2', poll_load(250, 251), ';@mark hp']]
    w0 = gemv(4, 4, GD, GC, GA, E)
    sides = {0: {0: g.issue_set(1) + [';@mark kv1'] + q(w0, 0, 5), 1: pre1 + xl + q(w0, 1, 5) + q(w0, 2, 5), 2: q(w0, 3, 5) + q(w0, 4, 5), 3: fin(32, GD, E)},
             1: {0: fin2(32, GD, 29, False) + [';@mark ms'], 2: msig, 3: q(ln1, 0, 5)},
             2: {0: q(ln1, 1, 5), 1: q(ln1, 2, 5), 2: mpoll + q(ln1, 3, 5), 3: q(ln1, 4, 5)},
             3: {1: mchk, 2: preq},
             4: {0: q(csum, 0, 3), 1: q(csum, 1, 3), 2: q(csum, 2, 3), 3: crd},
             5: {0: q(app, 0, 3), 1: q(app, 1, 3), 2: q(app, 2, 3), 3: hrd},
             6: {0: hst, 3: hsig}, 7: {3: hpoll}}
    MV = int(os.environ.get('MV', '2'))
    if MV:
        sides[2][2] = q(ln1, 3, 5); sides[3] = {2: mpoll, 3: mchk}; sides[4] = {0: preq, 1: q(csum, 0, 2), 2: q(csum, 1, 2), 3: crd}
    if MV == 2: sides[3] = {0: preq, 2: mpoll, 3: mchk}; del sides[4][0]
    if int(os.environ.get('EG', '0')):
        A(g.issue_set(1), ';@mark kv1', 's_waitcnt vmcnt(@wm@)', w0, 's_waitcnt lgkmcnt(0)\ns_barrier', fin(32, GD, E), 's_waitcnt lgkmcnt(0)', fin2(32, GD, 29, False), ';@mark ms')
        sides[0] = {0: pre1 + xl, 2: msig}
        sides[1] = {3: q(ln1, 0, 5)}
    A('s_waitcnt vmcnt(@kv0@)\ns_barrier'); A.stamp(1)
    A(g.reads(0, 0, 0))
    for sl in range(8):
        g.slab(A, sl, first=(sl == 0), loads=(sl < 6), last=(sl == 7), side=sides.get(sl), tag='kv', vm='@hs@' if sl == 6 else f'@kv{sl+1}@')
        A.stamp(2+sl)
```

```python
from core import *
from m1 import kv_store, kv_pack, kv_put, SWQ
BIG = 2.0**100
QR, SR, NM, KF, VF, PR, ET = 16, 80, 112, 144, 176, 208, 224
LA, US, VKN, VVC, VTQ, VDM, MT0 = 232, 234, 235, 236, 237, 14, 238
STHR, SFLR = 76, 78
SKV = SCT = SWS
SWO, SW1, SW2 = 48, 52, 56
def phase_attn(A, name):
    g = Gemm(MT=2, NT=4, G=2, KS=4, D=4, amode='fm', ldw=8192, acc=lambda mt, nt: v(QR+(mt*4+nt)*16, 16), bfr=KF, afr=('a', 128),
             vB0=6, vB1=7, vD=8, vA=[12, 13], sB=[SWQ, SWQ], sK=30, sWB=31, sA=SWS, sKA=32, bbase=98304,
             trans=lambda nt: True, ncol=lambda n64: n64*128)
    A('s_barrier')
    g.wnt = NT
    g.setup_w(A, 1, 2, 3)
    A(f's_lshl_b32 s30, s26, 8\ns_mov_b32 s32, {WS_H}')
    for sl in range(4): A(g.w_dma(sl))
    A(f'v_mov_b32 v{VDM}, v5\ns_lshl_b32 s33, s28, 16\nv_add_u32 v12, s33, v5\ns_lshl_b32 s33, s29, 16\nv_add_u32 v13, s33, v5')
    A('s_lshl_b32 s36, s26, 19\ns_lshl_b32 s37, s27, 16\ns_add_u32 s36, s36, s37\ns_lshl_b32 s37, s3, 14\ns_add_u32 s36, s36, s37')
    srd(A, SWO, 14, 0, 8*MB, 4096); srd(A, SW1, 18, 0, 7*MB, 4096); srd(A, SW2, 84, 0, 7*MB, 4096)
    dst = lambda nt, h: (208 if nt < 5 else 60) + 8*nt + 4*h
    for sl in range(4):
        for nt in (2*sl, 2*sl+1):
            for h in range(2): A(kv_pack(1, nt, h, 16 + 8*h, dst(nt, h)))
        if sl == 0: A('s_waitcnt vmcnt(@hp@)', poll_check(name+'_h', 250, 251, '0x01010101')); A.stamp(10)
        A(g.a_load(sl, range(4 if sl < 3 else 2))); A.mark(f'q{sl}')
    for nt in range(5, 8):
        for h in range(2): A(kv_put(1, nt, h, dst(nt, h)))
    put1 = [x for nt in range(5) for h in range(2) for x in kv_put(1, nt, h, dst(nt, h))]
    rest = [x for nt in range(8) for h in range(2) for x in kv_store(0, nt, h, 208 + ((2*nt+h) % 3)*12)]
    srd(A, 40, 88, 0, 1024*6144*2); srd(A, 44, 86, 0, 2048)
    late0 = [['v_lshrrev_b32 v244, 1, v0', 'v_lshlrev_b32 v243, 1, v244', 'v_mul_u32_u24 v244, 12288, v244', 'v_and_b32 v245, 1, v0', 'v_lshl_add_u32 v244, v245, 4, v244'],
             ['s_lshl_b32 s82, s24, 5', 's_add_u32 s82, s82, s25', 's_lshl_b32 s82, s82, 5', 's_add_u32 s82, s82, 4096', 's_lshl_b32 s83, s3, 10', 's_add_u32 s83, s83, 131072']]
    late = [['s_mov_b32 m0, s83', 's_add_u32 s83, s83, 4096', f'buffer_load_dwordx4 v244, s[40:43], s82 offen{NT} lds', f's_add_u32 s82, s82, {128*12288}']]
    PT = int(os.environ.get('PT', '1'))
    if PT:
        late0 += [['s_lshl_b32 s33, s26, 2', 's_and_b32 s21, s27, 3', 's_add_u32 s33, s33, s21', 's_lshl_b32 s96, s33, 16', f's_min_u32 s96, s96, {8*MB-67584}', 's_add_u32 s96, s96, 4096', 's_mul_i32 s66, s33, 57344'],
                  [f's_min_u32 s66, s66, {7*MB-67584}', 's_add_u32 s66, s66, 4096', 's_cmp_ge_u32 s27, 4', f's_cselect_b32 s96, s96, {OOB}', 's_cselect_b32 s67, 0, 9'],
                  [f's_mov_b32 s{72+i}, s{SWO+i}' for i in range(4)], ['v_min_u32 v245, 175, v0', 'v_lshlrev_b32 v245, 7, v245']]
        wpf = [[f'buffer_load_dword v239, v245, s[72:75], s96 offen', 's_add_u32 s96, s96, 22528', 's_add_u32 s67, s67, 1', 's_cmp_eq_u32 s67, 3',
                  f's_cselect_b32 s72, s{SW1}, s72', f's_cselect_b32 s73, s{SW1+1}, s73', 's_cselect_b32 s96, s66, s96'],
                 ['s_cmp_eq_u32 s67, 6', f's_cselect_b32 s72, s{SW2}, s72', f's_cselect_b32 s73, s{SW2+1}, s73', 's_cselect_b32 s96, s66, s96', 's_cmp_ge_u32 s67, 9', f's_cselect_b32 s96, {OOB}, s96']]
    VM = 12 if PT else 10
    latec = [f'buffer_load_ushort a{160+j}, v243, s[44:47], 0 offen offset:{j*256}' for j in range(8)]
    kvst = [['s_lshl_b32 s34, s26, 19', 's_lshl_b32 s33, s3, 12', 's_add_u32 s34, s34, s33', f's_add_u32 s34, s34, {WS_K}', 's_mov_b32 s38, s33', 's_add_u32 s39, s33, 16384'],
            [f's_add_u32 s35, s34, {16*MB}', 's_lshl_b32 s33, s27, 15', f's_sub_u32 s33, {32*16384}, s33', 's_add_u32 s36, s34, s33', 's_add_u32 s37, s35, s33']]
    def kvdma(which):
        so, se, sm = (34, 36, 38) if which == 'K' else (35, 37, 39)
        it = [[f's_cmp_lt_u32 s{so}, s{se}', f's_cselect_b32 s33, s{so}, 0x7f000000', f's_mov_b32 m0, s{sm}', f's_add_u32 s{so}, s{so}, 16384',
               f'buffer_load_dwordx4 v{VDM}, {s(SKV,4)}, s33 offen sc1 lds']]
        for i in range(1, 4): it.append([f'buffer_load_dwordx4 v{VDM}, {s(SKV,4)}, s33 offen offset:{i*1024} sc1 lds'])
        it[2] += [f's_add_u32 s{sm}, s{sm}, 32768']; it[3] += [f's_and_b32 s{sm}, s{sm}, 0x1ffff']
        return it
    A('s_waitcnt vmcnt(@q0@)\ns_barrier'); A.stamp(11)
    A(g.reads(0, 0, 0))
    ksig = [f's_lshl_b32 s33, s26, {5+FS}', f's_lshl_b32 s21, s27, {2+FS}', 's_add_u32 s33, s33, s21', f's_add_u32 s33, s33, {WS_FLG+F_KV}'] + flag_store(33, 2)
    kpoll = [['v_and_b32 v2, 7, v1', f'v_lshlrev_b32 v2, {2+FS}, v2', f's_lshl_b32 s33, s26, {5+FS}', f's_add_u32 s33, s33, {WS_FLG+F_KV}', 'v_add_u32 v251, s33, v2', poll_load(250, 251), ';@mark kp']]
    qs = {sl: {ss: q(put1, 2*sl+ss, 8) if sl < 4 else q(rest, 2*sl+ss-8, 12) for ss in range(2)} for sl in range(10)}
    qs.update({10: {0: kvst}, 11: {1: [ksig]}})
    for sl in range(12):
        g.slab(A, sl, zero=(sl == 0), tag='q', vm='@kvs@' if sl == 11 else f'@q{sl+1}@', side=qs.get(sl))
        if sl % 4 == 3: A.stamp(12 + sl//4)
    zo = [f'v_accvgpr_write_b32 a{i}, 0' for i in range(128)]
    zp = [f'v_mov_b32 v{PR+i}, 0' for i in range(16)] + [f'v_mov_b32 v{LA}, 0', f'v_mov_b32 v{LA+1}, 0',
          f'v_mov_b32 v{VVC}, v{VDM}', f'v_add_u32 v{VKN}, 32768, v{VDM}',
          'v_and_b32 v2, 31, v1', 's_lshl_b32 s33, s3, 5', 'v_add_u32 v2, s33, v2', 'v_lshrrev_b32 v3, 5, v1', 'v_lshlrev_b32 v3, 2, v3', 'v_sub_u32 v2, v2, v3',
          'v_cvt_f32_i32 v2, v2', 'v_add_f32 v2, 0.5, v2', f'v_mul_f32 v{VTQ}, {fl(BIG)}, v2',
          f's_mov_b32 s{STHR}, -1.0', f's_mov_b32 s{STHR+1}, -1.0', f's_mov_b32 s{SFLR}, 0xff800000', f's_mov_b32 s{SFLR+1}, 0xff800000']
    pre = [['s_lshl_b32 s21, s2, 15', 's_add_u32 s21, s21, 4096', 'v_lshlrev_b32 v242, 7, v0', f'buffer_load_dword v239, v242, {s(SWO,4)}, s21 offen'],
           ['s_mul_i32 s21, s2, 28672', 's_add_u32 s21, s21, 4096', f'buffer_load_dword v240, v242, {s(SW1,4)}, s21 offen'], [f'buffer_load_dword v241, v242, {s(SW2,4)}, s21 offen']]
    g.slab(A, 12, loads=False, tag='q', vm='@q13@', side={0: codepf('kn_at', 239) + zo[:32], 1: codepf('kn_st', 239) + zo[32:64]})
    g.slab(A, 13, loads=False, tail_loads=False, vm='@q14@', side={0: kpoll + zo[64:96], 1: zo[96:]})
    g.slab(A, 14, loads=False, tail_loads=False, vm='@kp@', post=poll_check(name+'_k', 250, 251, 1), side={0: zp + late0, 1: kvdma('K') + kvdma('K') + kvdma('V') + [';@mark kv1st']})
    g.slab(A, 15, loads=False, tail_loads=False, last=True, side={0: kvdma('K') + kvdma('V'), 1: codepf('kn_op', 239) + codepf('kn_f1', 239) if PT else pre[:1]})
    kread = lambda r, va, sub: f'ds_read_b128 {v(KF+4*r,4)}, v{va} offset:{sub*8192 + r*1024}'
    vread = lambda r, sub: f'ds_read_b128 {v(VF+4*r,4)}, v{VVC} offset:{16384 + sub*8192 + r*1024}'
    A('s_waitcnt vmcnt(@kv1st@)\ns_barrier')
    A.stamp(15); A('kn_at:')
    A([kread(r, VVC, 0) for r in range(8)])
    A('s_nop 7')
    for i in range(64): A(f'v_cvt_pk_bf16_f32 v{QR+i}, v{QR+2*i}, v{QR+2*i+1}')
    for i in range(32): A(f'v_mov_b32 v{NM+i}, 0')
    def qk(X, par):
        return [mfma(v(SR+16*par, 16), v(KF+4*r, 4), v(QR+32*X+4*r, 4), v(NM+16*X, 16) if r == 0 else v(SR+16*par, 16)) for r in range(8)]
    def pv(X, par):
        return [mfma(a(64*X+16*(r & 3), 16), v(VF+4*r, 4), v(PR+8*par+4*(r >> 2), 4), a(64*X+16*(r & 3), 16)) for r in range(8)]
    A('s_waitcnt lgkmcnt(0)', qk(0, 0), 's_nop 15')
    def softmax(par, mask=None):
        S = SR+16*par; e = lambda i: ET + (i & 3)
        def ex(i):
            o = []
            if mask is not None:
                c = 32*mask + (i & 3) + 8*(i >> 2)
                o += [f'v_add_f32 v{MT0}, {fl(-c*BIG)}, v{VTQ}', f'v_min_f32 v{S+i}, v{S+i}, v{MT0}']
            return o + [f'v_exp_f32 v{e(i)}, v{S+i}']
        o = ex(0) + ex(1)
        for i in range(0, 16, 2):
            if i > 0: o.append(f'v_add_f32 v{US}, v{US}, v{e(i)}')
            if i < 14: o += ex(i+2)
            o.append(f'v_add_f32 v{US}, v{US if i else e(0)}, v{e(i+1)}')
            o.append(f'v_cvt_pk_bf16_f32 v{PR+8*par+i//2}, v{e(i)}, v{e(i+1)}')
            if i < 14: o += ex(i+3)
        return o
    stubs = []
    def slot(cur, par, nxt, prv, mask=None, kr=None, vr=None, sync=False, adv=False, wk=None, wv=None, fix=False, extra=None, vm=10):
        st = []
        if sync:
            A(f's_waitcnt vmcnt({vm})' + (f' lgkmcnt({wk})' if wk is not None else '') + '\ns_barrier')
            st.append((kvdma('K') + kvdma('V') + late + (wpf if PT and not fix else []), 0, 15))
        elif wk is not None: A(f's_waitcnt lgkmcnt({wk})')
        m1 = qk(nxt, par ^ 1) if nxt is not None else []
        m2 = pv(prv, par ^ 1); n1 = len(m1); n = n1 + 8
        if wv is not None:
            if n1: st.insert(0, ([f's_waitcnt lgkmcnt({wv})'], n1-1, n1-1))
            else: A(f's_waitcnt lgkmcnt({wv})')
        pre = []
        if kr: pre.append(([kread(r, *kr) for r in range(8)], 0, 7))
        if vr is not None: pre.append(([vread(r, vr) for r in range(8)], n1, n-1))
        sm = softmax(par, mask)
        L = f'{name}_s{len(stubs)}'
        sm += [[f'v_cmp_nge_f32 vcc, s{STHR+cur}, v{US}', f's_cbranch_vccnz {L}', f'{L}r:', f'v_add_f32 v{LA+cur}, v{LA+cur}, v{US}']]
        stubs.append(f'{L}:\ns_call_b64 s[80:81], {name}_fix{cur}{par}{int(fix)}\ns_branch {L}r')
        post = []
        if adv: post.append(([[f'v_mov_b32 v{VVC}, v{VKN}', f'v_add_u32 v{VKN}, 32768, v{VKN}', f'v_and_b32 v{VKN}, 0x1ffff, v{VKN}']], n-1, n-1))
        if extra: post.append((extra, 8, n-1))
        wvs = [x for x in st if isinstance(x[0][0], str)]; oth = [x for x in st if not isinstance(x[0][0], str)]
        A(weave(m1 + m2, pre + oth + [(sm, 0, n-1)] + post + wvs))
    def p1(mask=None, last=False, extra=None, extra2=None, vm=VM):
        slot(0, 0, 1, 1, kr=(VVC, 1), vr=0, sync=True, vm=vm)
        slot(1, 1, 0, 0, mask=mask, wk=8, wv=0, extra=extra)
        slot(0, 0, 1, 1, kr=(VKN, 0), vr=1)
        slot(1, 1, 0, 0, mask=None if mask is None else mask+1, wk=8, wv=(8 if last else 0), kr=(VKN, 1) if last else None, adv=True, extra=extra2)
    def p2(last=False):
        for t in range(2):
            fin = last and t == 1
            slot(0, 0, 0, 0, mask=2*t if last else None, kr=None if fin else (VKN, 0), vr=0, sync=True, wk=8, wv=0 if fin else 8, fix=True, extra=([] if PT else pre[1+t:2+t]) + (codepf('kn_op', 239, st=65) if t == 0 else []) or None if last else None)
            slot(0, 1, None if fin else 0, 0, mask=2*t+1 if last else None, kr=None if fin else (VKN, 1), vr=1, wk=None if fin else 8, wv=0 if fin else 8, adv=True, fix=True)
    A.stamp(16)
    A(f's_lshl_b32 s20, s27, 1\ns_cmp_eq_u32 s20, 0\ns_cbranch_scc1 {name}_p1e\n.p2align 3\n{name}_p1:')
    p1()
    A(f's_sub_u32 s20, s20, 1\ns_cmp_lg_u32 s20, 0\ns_cbranch_scc1 {name}_p1\n{name}_p1e:')
    A.stamp(17)
    p1(mask=0, extra=latec); p1(mask=2, last=True, vm=VM+8)
    def finalize(X, T):
        A(f'v_mov_b32 v2, v{LA+X}\ns_nop 1\nv_permlane32_swap_b32 v{LA+X}, v2\ns_nop 1\nv_add_f32 v2, v{LA+X}, v2\nv_rcp_f32 v2, v2')
        A(f's_lshl_b32 s33, s{28+X}, 18\ns_lshl_b32 s21, s26, 13\ns_add_u32 s33, s33, s21\ns_add_u32 s33, s33, {WS_CTX}')
        for n in range(8):
            t = T + (n % 2) * 12
            for i in range(8): A(f'v_accvgpr_read_b32 v{t+i}, a{64*X+8*n+i}')
            for i in range(8): A(f'v_mul_f32 v{t+i}, v{t+i}, v2')
            for i in range(4): A(f'v_cvt_pk_bf16_f32 v{t+8+i}, v{t+2*i}, v{t+2*i+1}')
            if n == 4: A('s_add_u32 s33, s33, 4096')
            A(f'buffer_store_dwordx4 {v(t+8,4)}, v{VDM}, {s(SCT,4)}, s33 offen offset:{(n%4)*1024} sc1')
    A('s_nop 1', pv(1, 1), 's_nop 15')
    finalize(1, QR+32)
    for i in range(8): A(f'v_mov_b32 v{PR+8+i}, 0')
    A.stamp(18)
    A(f's_waitcnt lgkmcnt(0)\ns_sub_u32 s20, 7, s27\ns_lshl_b32 s20, s20, 1\ns_cmp_eq_u32 s20, 0\ns_cbranch_scc1 {name}_p2e\n.p2align 3\n{name}_p2:')
    p2()
    A(f's_sub_u32 s20, s20, 1\ns_cmp_lg_u32 s20, 0\ns_cbranch_scc1 {name}_p2\n{name}_p2e:')
    A.stamp(19)
    p2(last=True)
    A('s_waitcnt lgkmcnt(0)', pv(0, 1))
    A.stamp(20)
    A.mark('kz')
    finalize(0, SR)
    A.mark('cs')
    STUBS.extend(stubs)
    B = A; A = Asm()
    for X, par, fix in ((0, 0, 0), (1, 1, 0), (0, 0, 1), (0, 1, 1)):
        S = SR+16*par; S2 = SR+16*(par ^ 1)
        A(f'{name}_fix{X}{par}{fix}:\ns_nop 15')
        A(f'v_max3_f32 v2, v{S}, v{S+1}, v{S+2}')
        for i in range(3, 15, 2): A(f'v_max3_f32 v2, v2, v{S+i}, v{S+i+1}')
        A(f'v_max_f32 v2, v2, v{S+15}\nv_mov_b32 v3, v2\ns_nop 1\nv_permlane32_swap_b32 v2, v3\ns_nop 1\nv_max_f32 v2, v2, v3\nv_max_f32 v2, s{SFLR+X}, v2')
        for i in range(16): A(f'v_sub_f32 v{NM+16*X+i}, v{NM+16*X+i}, v2\nv_sub_f32 v{S+i}, v{S+i}, v2')
        if fix:
            for i in range(16): A(f'v_sub_f32 v{S2+i}, v{S2+i}, v2')
        A(f's_cmp_lg_u32 s{SFLR+X}, 0\ns_cbranch_scc1 {name}_fx{X}{par}{fix}')
        A(f'v_sub_f32 v3, 0, v2\nv_exp_f32 v3, v3\ns_nop 0\nv_mul_f32 v{LA+X}, v{LA+X}, v3')
        for i in range(0, 64, 2):
            A(f'v_accvgpr_read_b32 v4, a{64*X+i}\nv_accvgpr_read_b32 v5, a{64*X+i+1}\nv_mul_f32 v4, v4, v3\nv_mul_f32 v5, v5, v3')
            A(f'v_accvgpr_write_b32 a{64*X+i}, v4\nv_accvgpr_write_b32 a{64*X+i+1}, v5')
        A(f'{name}_fx{X}{par}{fix}:', softmax(par))
        A(f's_mov_b32 s{STHR+X}, {fl(4096.0)}\ns_mov_b32 s{SFLR+X}, 0\ns_setpc_b64 s[80:81]')
    STUBS.extend(A.L)
```

```python
from core import *
from m2 import SWO, SW1, SW2
from k3 import halfsum
def run_gemm(A, g, name, nslab, hook=None, st=None, fside={}, fpost={}):
    D, n = g.D, g.nvm(); NS = g.KS//g.G
    A(f's_waitcnt vmcnt(@{name}0@) lgkmcnt(0)\ns_barrier'); A.stamp(st)
    A(g.reads(0, 0, 0))
    if hook: A(hook(0, -1))
    for sl in range(D): g.slab(A, sl, zero=(sl == 0), tag=name, vm=f'@{name}{sl+1}@', side=hook and {ss: hook(sl, ss) for ss in range(NS)})
    A(f's_mov_b32 s20, {nslab//D - 2}\n.p2align 3\n{name}_l:')
    for sl in range(D): g.slab(A, sl, side=hook and {ss: hook(sl, ss) for ss in range(NS)})
    A(f's_sub_u32 s20, s20, 1\ns_cmp_lg_u32 s20, 0\ns_cbranch_scc1 {name}_l')
    for sl in range(D):
        g.slab(A, sl, loads=False, tail_loads=(sl == 0), vm=max(0, D-2-sl)*n, last=(sl == D-1),
               side={ss: hook(sl, ss, sl == D-1) for ss in range(NS)} if hook else fside.get(sl), post=fpost.get(sl))
def a_sets(A, g, name):
    for sl in range(4): A(g.a_load(sl, range(g.KS if sl < 3 else g.KS - g.G))); A.mark(f'{name}{sl}')
def wait_flags(A, name, soff, nfl):
    W8 = int(os.environ.get('W8', '1'))
    if W8: A('v_and_b32 v2, 7, v1\nv_lshl_add_u32 v2, s3, 3, v2')
    A(f'v_min_u32 v2, {nfl-1}, v{2 if W8 else 1}\nv_lshlrev_b32 v2, {2+FS}, v2\nv_add_u32 v251, s{soff}, v2')
    A(poll_load(250, 251), 's_waitcnt vmcnt(0)', poll_check(name+'_w', 250, 251, 1), 's_barrier' if W8 else [])

def thin_ids(A):
    if os.environ.get('MAP', '0') == '1':
        A('s_lshl_b32 s26, s24, 1\ns_and_b32 s27, s25, 1\ns_add_u32 s26, s26, s27\ns_lshr_b32 s27, s25, 1')
    else:
        A('s_and_b32 s26, s24, 3\ns_lshl_b32 s26, s26, 2\ns_and_b32 s27, s25, 3\ns_add_u32 s26, s26, s27')
        A('s_lshr_b32 s27, s24, 2\ns_lshl_b32 s27, s27, 3\ns_lshr_b32 s28, s25, 2\ns_add_u32 s27, s27, s28')
    A('s_lshl_b32 s28, s26, 2\ns_add_u32 s28, s28, s3')
def phase_thin(A, name, which, sig):
    o = which == 'o'; K = 4096 if o else 3584; SO = 40; sb = 21 if o else 28
    AC, WF, XR, C1, C2 = 16, 48, 112, 128, 160
    g = Gemm(MT=1, NT=2, G=4, KS=8, D=4, amode='fm', ldw=2048, acc=lambda mt, nt: v(AC+nt*16, 16), bfr=WF, afr=('a', 0),
             vB0=6, vB1=7, vD=8, vA=[12], sB=[SWO if o else SW2], sK=30, sWB=31, sA=SWS, sKA=32, bbase=0, trans=lambda nt: True, ncol=lambda n64: 0)
    pre, post = sig
    A(f'kn_{name}:')
    A(pre); thin_ids(A)
    g.setup_w(A, 1, 2, 3)
    A(f's_lshl_b32 s30, s27, 7\ns_mul_i32 s32, s28, {K*64}\ns_add_u32 s32, s32, {WS_CTX if o else WS_FF}\nv_lshlrev_b32 v12, 4, v1')
    A('s_waitcnt vmcnt(@kz@)\ns_barrier' if o else 's_barrier')
    for sl in range(4): A(g.w_dma(sl))
    A('v_lshrrev_b32 v13, 5, v1\nv_and_b32 v14, 31, v1\nv_lshlrev_b32 v15, 4, v13\ns_lshl_b32 s33, s27, 8')
    A('s_lshl_b32 s36, s28, 16\ns_lshl_b32 s37, s27, 7\ns_add_u32 s36, s36, s37')
    if o:
        A('v_lshlrev_b32 v3, 11, v14\nv_lshl_add_u32 v3, v13, 3, v3')
        for i in range(8): A(f'buffer_load_dwordx2 {v(XR+2*i,2)}, v3, {s(SX,4)}, s36 offen offset:{i*16}')
        A('v_lshlrev_b32 v2, 4, v0\nv_add_u32 v2, 131072, v2', [f'ds_read_b128 {v(16+4*j,4)}, v2 offset:{j*4096}' for j in range(8)], [f'v_accvgpr_read_b32 v{48+i}, a{160+i}' for i in range(8)])
        A('s_waitcnt lgkmcnt(0)', gemv(2, 8, 16, 48, 56, 65536))
        A(f's_lshl_b32 s35, s24, 5\ns_add_u32 s35, s35, s25\ns_lshl_b32 s35, s35, 6\ns_add_u32 s35, s35, {WS_MOD+8192}')
    else: srd(A, SO, 90, 0, 4*MB)
    A('s_waitcnt vmcnt(@cs@) lgkmcnt(0)\ns_barrier', post); A.stamp(sb)
    if o: A(fin(16, 16, 65536), 's_waitcnt lgkmcnt(0)', fin2(16, 16, 35, True), f's_lshl_b32 s34, s26, {7+FS}\ns_add_u32 s34, s34, {WS_FLG+F_C}')
    else: A(f's_lshr_b32 s34, s26, 1\ns_lshl_b32 s34, s34, {7+FS}\ns_add_u32 s34, s34, {WS_FLG+F_F}')
    wait_flags(A, name, 34, 32 if o else 28); A.stamp(sb+1)
    if o: A(f's_lshr_b32 s35, s2, 2\ns_lshl_b32 s35, s35, {2+FS}\ns_and_b32 s34, s2, 3\ns_add_u32 s35, s35, s34\ns_add_u32 s35, s35, {WS_FLG+F_M}', flag_store(35, 2, 'byte'))
    a_sets(A, g, name)
    cl = [f's_add_u32 s34, s33, {(2048 if o else 5120)*4}'] + [f'buffer_load_dwordx4 {v(C1+4*i,4)}, v15, {s(SWS,4)}, s34 offen offset:{i*32} sc1' for i in range(8)]
    if o:
        cl += [f's_add_u32 s34, s33, {4096*4}'] + [f'buffer_load_dwordx4 {v(C2+4*i,4)}, v15, {s(SWS,4)}, s34 offen offset:{i*32} sc1' for i in range(8)]
        mp = [[f'v_lshlrev_b32 v251, {2+FS}, v1', f'v_add_u32 v251, {WS_FLG+F_M}, v251', poll_load(250, 251)]]
        run_gemm(A, g, name, K//128, st=sb+2, fside={0: {0: mp, 1: codepf('kn_f1', 249)}, 2: {1: cl}}, fpost={2: poll_check(name+'_m', 250, 251, '0x01010101')})
        A('s_waitcnt vmcnt(0)')
    else:
        A(cl); run_gemm(A, g, name, K//128, st=sb+2)
    if o: A.stamp(24)
    XF = WF
    if not o: A([f'v_accvgpr_read_b32 v{XR+i}, a{128+i}' for i in range(16)])
    for i in range(16): A(f'v_lshlrev_b32 v{XF+2*i}, 16, v{XR+i}\nv_and_b32 v{XF+2*i+1}, 0xffff0000, v{XR+i}')
    for i in range(32): A(f'v_fmac_f32 v{XF+i}, v{AC+i}, v{C1+i}')
    for i in range(16): A(f'v_cvt_pk_bf16_f32 v{XR+i}, v{XF+2*i}, v{XF+2*i+1}')
    if o:
        for i in range(16): A(f'v_lshlrev_b32 v{XF+2*i}, 16, v{XR+i}\nv_and_b32 v{XF+2*i+1}, 0xffff0000, v{XR+i}\nv_accvgpr_write_b32 a{128+i}, v{XR+i}')
        for i in range(32):
            A(f'v_add_f32 v{C2+i}, 1.0, v{C2+i}\nv_cvt_pk_bf16_f32 v{C2+i}, v{C2+i}, v{C2+i}\nv_and_b32 v{C2+i}, 0xffff0000, v{C2+i}\nv_mul_f32 v{C2+i}, v{C2+i}, v{XF+i}')
        for i in range(16): A(f'v_cvt_pk_bf16_f32 v{AC+i}, v{C2+2*i}, v{C2+2*i+1}')
        A(f's_lshl_b32 s36, s28, 16\ns_lshl_b32 s37, s27, 12\ns_add_u32 s36, s36, s37\ns_add_u32 s36, s36, {WS_X1G}')
        for i in range(4): A(f'buffer_store_dwordx4 {v(AC+4*i,4)}, v12, {s(SWS,4)}, s36 offen offset:{i*1024} sc1')
        A(f'v_add_f32 v2, v{XF}, v{XF+1}\nv_add_f32 v3, v{XF+2}, v{XF+3}')
        for i in range(4, 32): A(f'v_add_f32 v{2+(i&1)}, v{2+(i&1)}, v{XF+i}')
        A('v_add_f32 v2, v2, v3')
        halfsum(A, 2, 4)
        A(f'v_mul_f32 v2, {fl(1/64)}, v2')
        for i in range(32): A(f'v_sub_f32 v{XF+i}, v{XF+i}, v2')
        for i in range(32): A(f'{"v_mul_f32" if i < 2 else "v_fmac_f32"} v{3+(i&1)}, v{XF+i}, v{XF+i}')
        A('v_add_f32 v3, v3, v4')
        halfsum(A, 3, 4)
        A(f's_lshl_b32 s36, s28, 8\ns_lshl_b32 s37, s27, 14\ns_add_u32 s36, s36, s37\ns_add_u32 s36, s36, {WS_ST}\nv_lshlrev_b32 v4, 3, v14\nv_lshl_or_b32 v4, v13, 30, v4')
        A(f'buffer_store_dwordx2 v[2:3], v4, {s(SWS,4)}, s36 offen sc1'); A.mark('cs')
    else:
        A('v_lshlrev_b32 v3, 11, v14\nv_lshl_add_u32 v3, v13, 4, v3')
        for m in range(4):
            A(f'v_permlane32_swap_b32 v{XR+4*m}, v{XR+4*m+2}\nv_permlane32_swap_b32 v{XR+4*m+1}, v{XR+4*m+3}')
        for m in range(4): A(f'buffer_store_dwordx4 {v(XR+4*m,4)}, v3, {s(SO,4)}, s36 offen offset:{m*32}{os.environ.get("OS", " nt")}')

def sig_ctx():
    return ([f's_lshl_b32 s38, s26, {2+FS}', f's_add_u32 s38, s38, {WS_FLG+F_C}', f's_lshl_b32 s39, s27, {7+FS}', f's_add_u32 s21, s38, {1920<<FS}', 's_sub_u32 s21, s21, s39', 's_add_u32 s38, s38, s39', 's_mov_b32 s39, s21'],
            flag_store(38, 2) + [f'buffer_store_dword v3, v2, {s(SWS,4)}, s39 offen sc0 sc1'])

def phase_ffn1(A, name):
    AC, WF, AE, EF, WE, VE, VBE, RS = 16, 144, 208, 224, 232, 14, 15, 240
    EB, UB = 65536, 65536+4096
    g = Gemm(MT=2, NT=4, G=2, KS=4, D=4, amode='fm', ldw=7168, acc=lambda mt, nt: v(AC+(mt*4+nt)*16, 16), bfr=WF, afr=('a', 0),
             vB0=6, vB1=7, vD=8, vA=[12, 13], sB=[SW1, SW1], sK=30, sWB=31, sA=SWS, sKA=32, bbase=0, trans=lambda nt: True, ncol=lambda n64: n64*128)
    A('kn_f1:')
    A(f's_lshl_b32 s38, s26, {6+FS}\ns_lshl_b32 s39, s27, {2+FS}\ns_add_u32 s38, s38, s39\ns_add_u32 s38, s38, {WS_FLG+F_X}')
    A(f's_cmp_lt_u32 s25, 28\ns_cbranch_scc1 {name}_go')
    A('s_waitcnt vmcnt(0)\ns_barrier', flag_store(38, 2), f's_mov_b32 s38, {OOB}\ns_branch {name}_skip\n{name}_go:')
    A('s_and_b32 s26, s24, 1\ns_lshl_b32 s26, s26, 2\ns_and_b32 s27, s25, 3\ns_add_u32 s26, s26, s27')
    A('s_lshr_b32 s27, s24, 1\ns_mul_i32 s27, s27, 7\ns_lshr_b32 s28, s25, 2\ns_add_u32 s27, s27, s28')
    A('s_lshl_b32 s28, s26, 3\ns_lshl_b32 s29, s3, 1\ns_add_u32 s28, s28, s29')
    A.mark('cs')
    g.setup_w(A, 1, 2, 3)
    A(f's_lshl_b32 s30, s27, 8\ns_lshl_b32 s32, s28, 16\ns_add_u32 s32, s32, {WS_X1G}\nv_lshlrev_b32 v12, 4, v1\nv_add_u32 v13, 65536, v12')
    A('s_barrier')
    for sl in range(4): A(g.w_dma(sl))
    A('v_bfe_u32 v2, v0, 1, 6\nv_lshlrev_b32 v2, 6, v2\nv_and_b32 v3, 1, v0\nv_lshl_add_u32 v2, v3, 4, v2\nv_lshrrev_b32 v3, 7, v0\nv_lshlrev_b32 v3, 12, v3\nv_sub_u32 v2, v2, v3')
    A(f'v_add_u32 v2, {4096*4}, v2\nbuffer_load_dwordx4 v[16:19], v2, {s(SWS,4)}, 0 offen sc1\nbuffer_load_dwordx4 v[20:23], v2, {s(SWS,4)}, 0 offen offset:32 sc1')
    A('s_waitcnt vmcnt(@cs@)\ns_barrier', flag_store(38, 2)); A.stamp(25)
    A(f's_lshl_b32 s34, s26, {7+FS}\ns_add_u32 s34, s34, {WS_FLG+F_X}')
    wait_flags(A, name, 34, 32)
    A(f'v_and_b32 v2, 31, v1\nv_lshlrev_b32 v2, 3, v2\nv_lshrrev_b32 v3, 5, v1\nv_lshl_add_u32 v2, v3, 17, v2\ns_lshl_b32 s33, s28, 8\ns_add_u32 s33, s33, {WS_ST}')
    for i in range(8):
        for mt in range(2): A(f'buffer_load_dwordx2 {v(32+16*mt+2*i,2)}, v2, {s(SWS,4)}, s33 offen offset:{mt*256} sc1')
        A('s_add_u32 s33, s33, 16384')
    A.mark('st')
    a_sets(A, g, name)
    A('v_cmp_gt_u32 vcc, 128, v0\nv_mov_b32 v3, 0\nv_mov_b32 v4, 1.0\nv_cndmask_b32 v3, v3, v4, vcc')
    for i in range(8): A(f'v_add_f32 v{16+i}, v{16+i}, v3')
    for i in range(4): A(f'v_cvt_pk_bf16_f32 v{24+i}, v{16+2*i}, v{17+2*i}')
    A(f'v_lshlrev_b32 v2, 4, v0\nv_add_u32 v2, {EB}, v2\nds_write_b128 v2, v[24:27]')
    A(f'v_and_b32 v2, 1, v1\nv_lshlrev_b32 v2, 11, v2\nv_lshrrev_b32 v3, 5, v1\nv_lshl_add_u32 v2, v3, 4, v2\nv_add_u32 v{VE}, {EB}, v2')
    A(f's_and_b32 s33, s3, 1\ns_lshl_b32 s33, s33, 6\nv_xor_b32 v{VBE}, s33, v6\ns_lshr_b32 s33, s3, 1\ns_lshl_b32 s33, s33, 10\nv_add_u32 v{VBE}, s33, v{VBE}')
    for r in range(16): A(f'v_mov_b32 v{AE+r}, 0')
    A('s_waitcnt vmcnt(@st@)')
    for mt in range(2):
        b = 32+16*mt
        A(f'v_add_f32 v2, v{b}, v{b+2}')
        for i in range(2, 8): A(f'v_add_f32 v2, v2, v{b+2*i}')
        halfsum(A, 2, 4)
        A(f'v_mul_f32 v2, {fl(1/16)}, v2')
        for i in range(8): A(f'v_sub_f32 v{b+2*i}, v{b+2*i}, v2')
        A(f'v_mul_f32 v3, v{b}, v{b}')
        for i in range(1, 8): A(f'v_fmac_f32 v3, v{b+2*i}, v{b+2*i}')
        A(f'v_mul_f32 v3, {fl(64.0)}, v3')
        for i in range(8): A(f'v_add_f32 v3, v3, v{b+2*i+1}')
        halfsum(A, 3, 4)
        A(f'v_mov_b32 v4, {fl(1e-5)}\nv_fmac_f32 v4, {fl(1/1024)}, v3\nv_rsq_f32 v4, v4\ns_nop 0')
        A(f'v_mov_b32 v{RS+2*mt}, v4\nv_mov_b32 v{RS+2*mt+1}, v4\nv_mul_f32 v4, v4, v2\nv_sub_f32 v{RS+4+2*mt}, 0, v4\nv_sub_f32 v{RS+5+2*mt}, 0, v4')
    def hook(sl, ss, last=False):
        o = []
        if ss >= 0: o += [mfma(v(AE, 16), v(WE+4*jj, 4), v(EF+4*jj, 4), v(AE, 16)) for jj in range(2)]
        nsl, nss = (sl, ss+1) if ss < 1 else ((sl+1) % 4, 0)
        if last and ss == 0: o += codepf('kn_f2', 249)
        if last and ss == 1: return o
        if ss == 1 and sl == 3: o.append(f'v_add_u32 v{VE}, 512, v{VE}')
        for jj in range(2):
            j = nss*2 + jj
            o.append(f'ds_read_b128 {v(EF+4*jj,4)}, v{VE} offset:{(nsl*4+j)*32}')
            for rd in range(2): o.append(f'ds_read_b64_tr_b16 {v(WE+4*jj+2*rd,2)}, v{VBE} offset:{nsl*16384 + (2*j+rd)*2048}')
        return o
    run_gemm(A, g, name, 16, hook=hook, st=26)
    A.stamp(27)
    A(f'v_and_b32 v2, 1, v1\nv_lshlrev_b32 v2, 9, v2\nv_lshrrev_b32 v3, 5, v1\nv_lshlrev_b32 v3, 6, v3\ns_lshl_b32 s33, s3, 7\nv_add3_u32 v2, v2, v3, s33\nv_add_u32 v2, {UB}, v2\nv_add_u32 v3, {UB}, v3')
    A('s_nop 7')
    for i in range(4): A(f'ds_write_b128 v2, {v(AE+4*i,4)} offset:{i*16}')
    A('s_waitcnt lgkmcnt(0)\ns_barrier')
    UT = WF
    for nt in range(2):
        for vec in range(2):
            for i in range(4): A(f'ds_read_b128 {v(UT+32*nt+16*vec+4*i,4)}, v3 offset:{vec*512+nt*128+i*16}')
    A(f's_mul_i32 s33, s28, {224*1024}\ns_lshl_b32 s34, s27, 13\ns_add_u32 s33, s33, s34\ns_add_u32 s33, s33, {WS_FF}\ns_add_u32 s34, s33, {224*1024}')
    for nt in range(4):
        u = UT+32*(nt & 1)
        A(f's_waitcnt lgkmcnt({8 if nt < 3 else 0})')
        for mt in range(2):
            ac = AC+(mt*4+nt)*16
            for i in range(0, 16, 2): A(f'v_pk_fma_f32 {v(AE+i,2)}, {v(u+i,2)}, {v(RS+4+2*mt,2)}, {v(u+16+i,2)}')
            for i in range(0, 16, 2): A(f'v_pk_fma_f32 {v(ac+i,2)}, {v(ac+i,2)}, {v(RS+2*mt,2)}, {v(AE+i,2)}')
            for i in range(8): A(f'v_cvt_pk_bf16_f32 v{ac+i}, v{ac+2*i}, v{ac+2*i+1}')
            for i in range(8): A(f'v_pk_max_i16 v{ac+i}, v{ac+i}, 0')
            if nt == 2 and mt == 0: A('s_add_u32 s33, s33, 4096\ns_add_u32 s34, s34, 4096')
            for h in range(2): A(f'buffer_store_dwordx4 {v(ac+4*h,4)}, v12, {s(SWS,4)}, s{33+mt} offen offset:{((2*nt+h) % 4)*1024} sc1')
        if nt < 2:
            for vec in range(2):
                for i in range(4): A(f'ds_read_b128 {v(u+16*vec+4*i,4)}, v3 offset:{vec*512+(nt+2)*128+i*16}')
    A(f's_lshl_b32 s38, s26, {7+FS}\ns_lshl_b32 s39, s27, {2+FS}\ns_add_u32 s38, s38, s39\ns_add_u32 s38, s38, {WS_FLG+F_F}')
    A(f'{name}_skip:'); A.mark('cs')
```

```python
from core import *
from k1 import allreduce, bf16_round, LOG2E, QSCALE
SWQ = 72
def kv_store(mt, nt, h, t):
    ab = (mt*8+nt)*16 + 8*h
    off = WS_K + mt*8192 + (2*nt+h)*1024 if nt < 4 else WS_V + mt*8192 + h*4096 + (nt-4)*1024
    return ([f'v_accvgpr_read_b32 v{t+i}, a{ab+i}' for i in range(8)] + [f'v_cvt_pk_bf16_f32 v{t+8+i}, v{t+2*i}, v{t+2*i+1}' for i in range(4)] +
            [[f's_add_u32 s37, s36, {off}', f'buffer_store_dwordx4 {v(t+8,4)}, v5, {s(SWS,4)}, s37 offen sc1']])

def kv_off(mt, nt, h): return WS_K + mt*8192 + (2*nt+h)*1024 if nt < 4 else WS_V + mt*8192 + h*4096 + (nt-4)*1024
def kv_pack(mt, nt, h, t, d):
    ab = (mt*8+nt)*16 + 8*h
    return [f'v_accvgpr_read_b32 v{t+i}, a{ab+i}' for i in range(8)] + [f'v_cvt_pk_bf16_f32 v{d+i}, v{t+2*i}, v{t+2*i+1}' for i in range(4)]
def kv_put(mt, nt, h, d): return [[f's_add_u32 s37, s36, {kv_off(mt, nt, h)}', f'buffer_store_dwordx4 {v(d,4)}, v5, {s(SWS,4)}, s37 offen sc1']]
def phase_kv(A, name):
    A('s_load_dwordx16 s[4:19], s[0:1], 0\ns_load_dwordx8 s[84:91], s[0:1], 64\ns_load_dwordx4 s[92:95], s[0:1], 96')
    A('v_and_b32 v1, 63, v0\nv_lshrrev_b32 v2, 6, v0\ns_nop 0\nv_readfirstlane_b32 s3, v2')
    A('s_and_b32 s24, s2, 7\ns_lshr_b32 s25, s2, 3')
    A('s_and_b32 s26, s25, 3\ns_lshl_b32 s27, s24, 2\ns_add_u32 s26, s26, s27')
    A('s_lshr_b32 s27, s25, 2')
    A('s_lshl_b32 s28, s24, 5\ns_add_u32 s28, s28, s25')
    A('s_waitcnt lgkmcnt(0)\ns_mov_b32 s22, s94\ns_mov_b32 s23, s95\ns_mov_b32 s97, 0')
    SUK, SUV, SCK, SWM, SC, SDB = 40, 44, 48, 52, 56, 64
    srd(A, SWS, 22, 0, 96*MB); srd(A, SWM, 88, 0, 1024*6144*2); srd(A, SC, 86, 0, 2048)
    GD, GC, GA, XR, XF, CO = 160, 224, 228, 144, 192, 32
    srd(A, SUK, 10, 0, 4*MB, 4096); srd(A, SUV, 12, 0, 4*MB, 4096); srd(A, SCK, 6, 0, 2*MB)
    def pf():
        A('s_getpc_b64 s[0:1]\nkn_cb:', codepf('kn_cb', 29, 32))
        A(f'v_lshlrev_b32 v31, 10, v1\ns_lshl_b32 s21, s25, 16\ns_lshl_b32 s34, s3, 7\ns_add_u32 s21, s21, s34\nbuffer_load_dword v29, v31, {s(SCK,4)}, s21 offen')
        A('v_lshrrev_b32 v2, 4, v1\nv_lshlrev_b32 v2, 19, v2\nv_bfe_u32 v3, v1, 3, 1\nv_lshl_add_u32 v2, v3, 13, v2\nv_and_b32 v3, 7, v1\nv_lshl_add_u32 v2, v3, 7, v2')
        A('s_and_b32 s34, s3, 1\ns_lshl_b32 s34, s34, 21\ns_lshl_b32 s35, s25, 14\ns_add_u32 s34, s34, s35\ns_lshl_b32 s35, s24, 10\ns_add_u32 s34, s34, s35\ns_add_u32 s34, s34, 4096')
        A(f's_cmp_lt_u32 s3, 2\ns_cselect_b32 s76, s{SUK}, s{SUV}\ns_cselect_b32 s77, s{SUK+1}, s{SUV+1}\ns_mov_b32 s78, s{SUK+2}\ns_mov_b32 s79, s{SUK+3}\nv_mov_b32 v30, v2')
        if ORD == 4: A(f's_bitcmp1_b32 s3, 0\ns_cselect_b32 s96, s34, {OOB}\ns_cselect_b32 s34, {OOB}, s34')
        A(f'buffer_load_dword v29, v30, s[76:79], s34 offen{NT}')
    def fw():
        A(f'v_cmp_gt_u32 vcc, 8, v0\nv_mov_b32 v3, {OOB}\nv_lshlrev_b32 v2, {2+FS}, v0\nv_cndmask_b32 v2, v3, v2, vcc\nv_mov_b32 v3, 0')
        A(f's_lshl_b32 s34, s2, {5+FS}\ns_add_u32 s34, s34, {WS_FLG}\nbuffer_store_dword v3, v2, {s(SWS,4)}, s34 offen sc0 sc1')
        A('s_and_b32 s29, s28, 3\ns_lshl_b32 s34, s29, 9\nv_lshrrev_b32 v3, 2, v0\nv_lshlrev_b32 v2, 1, v3\nv_mul_u32_u24 v3, 12288, v3\nv_and_b32 v4, 3, v0\nv_lshl_add_u32 v3, v4, 4, v3')
        for j in range(4): A(f'buffer_load_ushort v{GC+j}, v2, {s(SC,4)}, s34 offen offset:{j*128}')
        A(f's_mul_i32 s34, s29, {256*12288}\ns_lshr_b32 s35, s28, 2\ns_lshl_b32 s35, s35, 6\ns_add_u32 s34, s34, s35')
        for j in range(4): A(f'buffer_load_dwordx4 {v(GD+4*j,4)}, v3, {s(SWM,4)}, s34 offen{NT}\ns_add_u32 s34, s34, {64*12288}')
        A.mark('wm')
        A(f's_lshl_b32 s29, s29, 13\ns_lshl_b32 s35, s35, 1\ns_add_u32 s29, s29, s35\ns_add_u32 s29, s29, {WS_PART}')
    ORD = int(os.environ.get('ORD', '4'))
    if ORD == 0: pf(); fw()
    if ORD == 2: fw()
    g = Gemm(MT=2, NT=8, G=1, KS=4, D=2, amode='lds', ldw=8192, acc=lambda mt, nt: a((mt*8+nt)*16, 16), bfr=64, afr=('v', 128),
             vB0=6, vB1=7, vD=8, vAD=16, vAR=24, sB=[SUK, SUK, SUV, SUV], sK=30, sWB=31, sA=SCK, sKA=32, sWA=33, bbase=65536,
             trans=lambda nt: nt < 4, ncol=lambda n64: (n64 & 1)*128)
    g.wnt = NT
    g.setup_w(A, 1, 2, 3)
    A('s_lshl_b32 s30, s26, 8')
    A('v_lshrrev_b32 v2, 3, v1\nv_lshlrev_b32 v2, 10, v2\nv_lshrrev_b32 v3, 4, v1\nv_and_b32 v4, 7, v1')
    A('v_xor_b32 v5, v3, v4\nv_lshl_add_u32 v16, v5, 4, v2\nv_xor_b32 v5, 4, v5\nv_lshl_add_u32 v17, v5, 4, v2')
    for i in range(7, 0, -1): A(f'v_add_u32 v{16+i}, {i*8192 - (i%4)*1024}, v{16+(i&1)}')
    A('s_lshl_b32 s32, s27, 18\ns_lshl_b32 s33, s3, 16\ns_add_u32 s32, s32, s33\ns_lshl_b32 s33, s3, 13')
    A(g.issue_set(0)); A.mark('kv0')
    if ORD >= 3: fw(); A(g.issue_set(1)); A.mark('kv1')
    if ORD: pf()
    A('v_and_b32 v2, 31, v1\nv_lshlrev_b32 v3, 7, v2\nv_add_u32 v3, s33, v3\nv_bfe_u32 v2, v1, 1, 3\nv_lshrrev_b32 v4, 5, v1\nv_xor_b32 v2, v2, v4')
    for j in range(4): A(f'v_xor_b32 v4, {2*j}, v2\nv_lshl_add_u32 v{24+j}, v4, 4, v3')
    srd(A, SX, 4, 0, 4*MB); srd(A, SDB, 92, 0, 256); srd(A, SWQ, 8, 0, 8*MB, 4096)
    A('s_lshl_b32 s35, s28, 3\ns_lshl_b32 s36, s3, 1\ns_add_u32 s35, s35, s36')
    A('v_lshlrev_b32 v28, 5, v1\nv_lshlrev_b32 v5, 4, v1')
    pre1 = [['s_add_u32 s21, s21, 512', f'buffer_load_dword v29, v31, {s(SCK,4)}, s21 offen']]
    xl = [['s_lshl_b32 s34, s35, 11'] + [f'buffer_load_dwordx4 {v(XR+8*r+4*h,4)}, v28, {s(SX,4)}, s34 offen offset:{r*2048+h*16}' for r in range(2) for h in range(2)]]
    preq = [['v_lshrrev_b32 v252, 3, v0', 'v_lshlrev_b32 v252, 13, v252', 'v_and_b32 v253, 7, v0', 'v_lshl_add_u32 v252, v253, 7, v252'],
            ['s_lshl_b32 s34, s25, 18', 's_lshl_b32 s36, s24, 10', 's_add_u32 s34, s34, s36', 's_add_u32 s34, s34, 4096', f'buffer_load_dword v29, v252, {s(SWQ,4)}, s34 offen{NT}']]
    T = 244
    ln1 = []
    for r in range(2):
        for i in range(8): ln1 += [f'v_lshlrev_b32 v{XF+16*r+2*i}, 16, v{XR+8*r+i}', f'v_and_b32 v{XF+16*r+2*i+1}, 0xffff0000, v{XR+8*r+i}']
    for i in range(1, 16):
        for r in range(2): ln1.append(f'v_add_f32 v{T+r}, v{XF+16*r+i}, v{(XF+16*r) if i == 1 else T+r}')
    ln1 += allreduce([T, T+1], [T+2, T+3])
    for r in range(2): ln1.append(f'v_mul_f32 v{T+r}, {fl(1/1024)}, v{T+r}')
    for i in range(16):
        for r in range(2): ln1.append(f'v_sub_f32 v{XF+16*r+i}, v{XF+16*r+i}, v{T+r}')
    for i in range(16):
        for r in range(2): ln1.append(f'{"v_mul_f32" if i == 0 else "v_fmac_f32"} v{T+4+r}, v{XF+16*r+i}, v{XF+16*r+i}')
    ln1 += allreduce([T+4, T+5], [T+2, T+3])
    ln1 += [f'v_mov_b32 v{T}, {fl(1e-5)}', f'v_mov_b32 v{T+1}, {fl(1e-5)}', f'v_fmac_f32 v{T}, {fl(1/1024)}, v{T+4}', f'v_fmac_f32 v{T+1}, {fl(1/1024)}, v{T+5}',
            f'v_rsq_f32 v{T}, v{T}', f'v_rsq_f32 v{T+1}, v{T+1}', 's_nop 0']
    for i in range(16):
        for r in range(2): ln1.append(f'v_mul_f32 v{XF+16*r+i}, v{XF+16*r+i}, v{T+r}')
    E, CF, HS = 131072, 133120, 141312
    msig = [['s_waitcnt vmcnt(@ms@)'] + flag_store(2, 252, 'byte', SDB)]
    mpoll = [['v_lshlrev_b32 v31, 2, v1', poll_load(250, 31, SDB), ';@mark mp']]
    mchk = [['s_waitcnt vmcnt(@mp@)'] + poll_check(name+'_m', 250, 31, '0x01010101', SDB), ['v_lshlrev_b32 v2, 5, v0', f's_mov_b32 s34, {WS_PART}']]
    for k in range(4): mchk += [f'buffer_load_dwordx4 {v(CO+8*k,4)}, v2, {s(SWS,4)}, s34 offen sc1', [f'buffer_load_dwordx4 {v(CO+8*k+4,4)}, v2, {s(SWS,4)}, s34 offen offset:16 sc1', 's_add_u32 s34, s34, 8192']]
    csum = ['s_waitcnt vmcnt(@co@)', ['s_cmp_ge_u32 s3, 2', 's_cselect_b32 s34, 1.0, 0']]
    for k in range(1, 4): csum += [f'v_add_f32 v{CO+i}, v{CO+i}, v{CO+8*k+i}' for i in range(8)]
    for op in ('v_cvt_pk_bf16_f32 @, @, @', 'v_and_b32 @, 0xffff0000, @', 'v_add_f32 @, s34, @', 'v_cvt_pk_bf16_f32 @, @, @', 'v_and_b32 @, 0xffff0000, @', f'v_mul_f32 @, {fl(QSCALE)}, @'):
        csum += [op.replace('@', f'v{CO+i}') for i in range(8)]
    csum += ['v_lshlrev_b32 v2, 5, v0', f'v_add_u32 v2, {CF}, v2', f'ds_write_b128 v2, {v(CO,4)}', f'ds_write_b128 v2, {v(CO+4,4)} offset:16']
    crd = ['v_lshlrev_b32 v2, 6, v1', f'v_add_u32 v2, {CF}, v2'] + [f'ds_read_b128 {v(CO+16*k+4*i,4)}, v2 offset:{k*4096+i*16}' for k in range(2) for i in range(4)]
    app = []
    for r in range(2):
        app += [f'v_fma_f32 v{XF+16*r+i}, v{XF+16*r+i}, v{CO+16+i}, v{CO+i}' for i in range(16)]
        for gg in range(2): app += [f'v_cvt_pk_bf16_f32 v{XR+8*r+4*gg+i}, v{XF+16*r+f}, v{XF+16*r+f+1}' for i, f in enumerate((4*gg, 4*gg+2, 8+4*gg, 10+4*gg))]
    app += [['s_lshl_b32 s34, s3, 1', 'v_and_b32 v3, 15, v1', 'v_lshlrev_b32 v2, 8, v1'], 'v_xor_b32 v3, s34, v3', f'v_add_u32 v2, {HS}, v2']
    for r in range(2):
        for gg in range(2): app += [f'v_xor_b32 v4, {gg*8+r}, v3', 'v_lshl_add_u32 v4, v4, 4, v2', f'ds_write_b128 v4, {v(XR+8*r+4*gg,4)}']
    hrd = ['v_lshrrev_b32 v2, 4, v0', 'v_xor_b32 v2, v2, v0', 'v_lshlrev_b32 v2, 4, v2', f'v_add_u32 v2, {HS}, v2'] + [f'ds_read_b128 {v(XR+4*i,4)}, v2 offset:{i*4096}' for i in range(4)]
    hst = [['s_lshr_b32 s36, s28, 2', 's_lshl_b32 s36, s36, 16', 's_and_b32 s37, s28, 3', 's_lshl_b32 s37, s37, 7'], ['s_add_u32 s36, s36, s37', f's_add_u32 s36, s36, {WS_H}'],
           ['v_lshrrev_b32 v2, 3, v0', 'v_lshlrev_b32 v2, 9, v2', 'v_and_b32 v3, 7, v0', 'v_lshl_add_u32 v2, v3, 4, v2']]
    hst += [[f'buffer_store_dwordx4 {v(XR+4*i,4)}, v2, {s(SWS,4)}, s36 offen sc1', 's_add_u32 s36, s36, 16384'] for i in range(4)] + [';@mark hs']
    hsig = [['s_lshr_b32 s36, s28, 2', f's_lshl_b32 s36, s36, {2+FS}', 's_and_b32 s37, s28, 3', 's_add_u32 s36, s36, s37', f's_add_u32 s36, s36, {WS_FLG+F_H}'] + flag_store(36, 2, 'byte')]
    hpoll = [['s_sub_u32 s28, 15, s27', 's_lshl_b32 s28, s28, 2', 's_add_u32 s28, s28, s3', 's_lshl_b32 s29, s27, 2', 's_add_u32 s29, s29, s3'],
             ['v_mov_b32 v2, s28', 'v_mov_b32 v3, s29', 'v_and_b32 v4, 1, v1', 'v_cmp_eq_u32 vcc, 0, v4', 's_nop 1'],
             ['v_cndmask_b32 v2, v3, v2, vcc', f'v_lshlrev_b32 v2, {2+FS}, v2', f'v_add_u32 v251, {WS_FLG+F_H}, v2', poll_load(250, 251), ';@mark hp']]
    w0 = gemv(4, 4, GD, GC, GA, E)
    sides = {0: {0: g.issue_set(1) + [';@mark kv1'] + q(w0, 0, 5), 1: pre1 + xl + q(w0, 1, 5) + q(w0, 2, 5), 2: q(w0, 3, 5) + q(w0, 4, 5), 3: fin(32, GD, E)},
             1: {0: fin2(32, GD, 29, False) + [';@mark ms'], 2: msig, 3: q(ln1, 0, 5)},
             2: {0: q(ln1, 1, 5), 1: q(ln1, 2, 5), 2: mpoll + q(ln1, 3, 5), 3: q(ln1, 4, 5)},
             3: {1: mchk, 2: preq},
             4: {0: q(csum, 0, 3), 1: q(csum, 1, 3), 2: q(csum, 2, 3), 3: crd},
             5: {0: q(app, 0, 3), 1: q(app, 1, 3), 2: q(app, 2, 3), 3: hrd},
             6: {0: hst, 3: hsig}, 7: {3: hpoll}}
    MV = int(os.environ.get('MV', '2'))
    if MV:
        sides[2][2] = q(ln1, 3, 5); sides[3] = {2: mpoll, 3: mchk}; sides[4] = {0: preq, 1: q(csum, 0, 2), 2: q(csum, 1, 2), 3: crd}
    if MV == 2: sides[3] = {0: preq, 2: mpoll, 3: mchk}; del sides[4][0]
    if ORD == 3: sides[0] = {0: pre1 + xl, 1: ['s_waitcnt vmcnt(@wm@)'] + q(w0, 0, 2), 2: q(w0, 1, 2), 3: fin(32, GD, E)}
    if ORD == 4:
        sides[0] = {0: pre1 + ['buffer_load_dword v29, v30, s[76:79], s96 offen'], 1: ['s_waitcnt vmcnt(@wm@)'] + q(w0, 0, 2), 2: q(w0, 1, 2), 3: fin(32, GD, E)}
        sides[1] = {0: sides[1][0], 1: xl + [';@mark xl'], 2: msig}
        sides[2] = {ss: (['s_waitcnt vmcnt(@xl@)'] if ss == 0 else []) + q(ln1, ss, 6) for ss in range(4)}
        sides[3] = {0: preq + q(ln1, 4, 6), 1: q(ln1, 5, 6), 2: mpoll, 3: mchk}
        if os.environ.get('PQ', '1') == '1': sides[3][0] = q(ln1, 4, 6); sides[4][0] = preq
    if os.environ.get('XL') == '1': sides[0] = {0: xl, 1: ['s_waitcnt vmcnt(@wm@)'] + q(w0, 0, 2), 2: q(w0, 1, 2), 3: fin(32, GD, E)}; sides[1][1] = pre1
    if int(os.environ.get('EG', '0')):
        A(g.issue_set(1), ';@mark kv1', 's_waitcnt vmcnt(@wm@)', w0, 's_waitcnt lgkmcnt(0)\ns_barrier', fin(32, GD, E), 's_waitcnt lgkmcnt(0)', fin2(32, GD, 29, False), ';@mark ms')
        sides[0] = {0: pre1 + xl, 2: msig}
        sides[1] = {3: q(ln1, 0, 5)}
    A('s_waitcnt vmcnt(@kv0@)\ns_barrier'); A.stamp(1)
    A(g.reads(0, 0, 0))
    for sl in range(8):
        g.slab(A, sl, first=(sl == 0), loads=(sl < 6), last=(sl == 7), side=sides.get(sl), tag='kv', vm='@hs@' if sl == 6 else f'@kv{sl+1}@')
        A.stamp(2+sl)
```

```python
from core import *
from k1 import allreduce, bf16_round, LOG2E, QSCALE
SWQ = 72
def kv_store(mt, nt, h, t):
    ab = (mt*8+nt)*16 + 8*h
    off = WS_K + mt*8192 + (2*nt+h)*1024 if nt < 4 else WS_V + mt*8192 + h*4096 + (nt-4)*1024
    return ([f'v_accvgpr_read_b32 v{t+i}, a{ab+i}' for i in range(8)] + [f'v_cvt_pk_bf16_f32 v{t+8+i}, v{t+2*i}, v{t+2*i+1}' for i in range(4)] +
            [[f's_add_u32 s37, s36, {off}', f'buffer_store_dwordx4 {v(t+8,4)}, v5, {s(SWS,4)}, s37 offen sc1']])

def kv_off(mt, nt, h): return WS_K + mt*8192 + (2*nt+h)*1024 if nt < 4 else WS_V + mt*8192 + h*4096 + (nt-4)*1024
def kv_pack(mt, nt, h, t, d):
    ab = (mt*8+nt)*16 + 8*h
    return [f'v_accvgpr_read_b32 v{t+i}, a{ab+i}' for i in range(8)] + [f'v_cvt_pk_bf16_f32 v{d+i}, v{t+2*i}, v{t+2*i+1}' for i in range(4)]
def kv_put(mt, nt, h, d): return [[f's_add_u32 s37, s36, {kv_off(mt, nt, h)}', f'buffer_store_dwordx4 {v(d,4)}, v5, {s(SWS,4)}, s37 offen sc1']]
def phase_kv(A, name):
    A('s_load_dwordx16 s[4:19], s[0:1], 0\ns_load_dwordx8 s[84:91], s[0:1], 64\ns_load_dwordx4 s[92:95], s[0:1], 96')
    A('v_and_b32 v1, 63, v0\nv_lshrrev_b32 v2, 6, v0\ns_nop 0\nv_readfirstlane_b32 s3, v2')
    A('s_and_b32 s24, s2, 7\ns_lshr_b32 s25, s2, 3')
    A('s_and_b32 s26, s25, 3\ns_lshl_b32 s27, s24, 2\ns_add_u32 s26, s26, s27')
    A('s_lshr_b32 s27, s25, 2')
    A('s_lshl_b32 s28, s24, 5\ns_add_u32 s28, s28, s25')
    A('s_waitcnt lgkmcnt(0)\ns_mov_b32 s22, s94\ns_mov_b32 s23, s95\ns_mov_b32 s97, 0')
    SUK, SUV, SCK, SWM, SC, SDB = 40, 44, 48, 52, 56, 64
    srd(A, SWS, 22, 0, 96*MB); srd(A, SWM, 88, 0, 1024*6144*2); srd(A, SC, 86, 0, 2048)
    GD, GC, GA, XR, XF, CO = 160, 224, 228, 144, 192, 32
    srd(A, SUK, 10, 0, 4*MB, 4096); srd(A, SUV, 12, 0, 4*MB, 4096); srd(A, SCK, 6, 0, 2*MB)
    DF = int(os.environ.get('DF', '2'))
    def pf():
        A('s_getpc_b64 s[0:1]\nkn_cb:', codepf('kn_cb', 29, 32))
        A(f'v_lshlrev_b32 v31, 10, v1\ns_lshl_b32 s21, s25, 16\ns_lshl_b32 s34, s3, 7\ns_add_u32 s21, s21, s34')
        if not DF: A(f'buffer_load_dword v29, v31, {s(SCK,4)}, s21 offen')
        A('v_lshrrev_b32 v2, 4, v1\nv_lshlrev_b32 v2, 19, v2\nv_bfe_u32 v3, v1, 3, 1\nv_lshl_add_u32 v2, v3, 13, v2\nv_and_b32 v3, 7, v1\nv_lshl_add_u32 v2, v3, 7, v2')
        A('s_and_b32 s34, s3, 1\ns_lshl_b32 s34, s34, 21\ns_lshl_b32 s35, s25, 14\ns_add_u32 s34, s34, s35\ns_lshl_b32 s35, s24, 10\ns_add_u32 s34, s34, s35\ns_add_u32 s34, s34, 4096')
        A(f's_cmp_lt_u32 s3, 2\ns_cselect_b32 s76, s{SUK}, s{SUV}\ns_cselect_b32 s77, s{SUK+1}, s{SUV+1}\ns_mov_b32 s78, s{SUK+2}\ns_mov_b32 s79, s{SUK+3}\nv_mov_b32 v30, v2')
        if ORD == 4: A(f's_bitcmp1_b32 s3, 0\ns_cselect_b32 s96, s34, {OOB}\ns_cselect_b32 s34, {OOB}, s34')
        A('s_mov_b32 s37, s34' if DF else f'buffer_load_dword v29, v30, s[76:79], s34 offen{NT}')
    def fw():
        A(f'v_cmp_gt_u32 vcc, 8, v0\nv_mov_b32 v3, {OOB}\nv_lshlrev_b32 v2, {2+FS}, v0\nv_cndmask_b32 v2, v3, v2, vcc\nv_mov_b32 v3, 0')
        A(f's_lshl_b32 s34, s2, {5+FS}\ns_add_u32 s34, s34, {WS_FLG}\nbuffer_store_dword v3, v2, {s(SWS,4)}, s34 offen sc0 sc1')
        A('s_and_b32 s29, s28, 3\ns_lshl_b32 s34, s29, 9\nv_lshrrev_b32 v3, 2, v0\nv_lshlrev_b32 v2, 1, v3\nv_mul_u32_u24 v3, 12288, v3\nv_and_b32 v4, 3, v0\nv_lshl_add_u32 v3, v4, 4, v3')
        for j in range(4): A(f'buffer_load_ushort v{GC+j}, v2, {s(SC,4)}, s34 offen offset:{j*128}')
        A(f's_mul_i32 s34, s29, {256*12288}\ns_lshr_b32 s35, s28, 2\ns_lshl_b32 s35, s35, 6\ns_add_u32 s34, s34, s35')
        for j in range(4): A(f'buffer_load_dwordx4 {v(GD+4*j,4)}, v3, {s(SWM,4)}, s34 offen{NT}\ns_add_u32 s34, s34, {64*12288}')
        A.mark('wm')
        A(f's_lshl_b32 s29, s29, 13\ns_lshl_b32 s35, s35, 1\ns_add_u32 s29, s29, s35\ns_add_u32 s29, s29, {WS_PART}')
    ORD = int(os.environ.get('ORD', '4'))
    if ORD == 0: pf(); fw()
    if ORD == 2: fw()
    g = Gemm(MT=2, NT=8, G=1, KS=4, D=2, amode='lds', ldw=8192, acc=lambda mt, nt: a((mt*8+nt)*16, 16), bfr=64, afr=('v', 128),
             vB0=6, vB1=7, vD=8, vAD=16, vAR=24, sB=[SUK, SUK, SUV, SUV], sK=30, sWB=31, sA=SCK, sKA=32, sWA=33, bbase=65536,
             trans=lambda nt: nt < 4, ncol=lambda n64: (n64 & 1)*128)
    g.wnt = NT
    g.setup_w(A, 1, 2, 3)
    A('s_lshl_b32 s30, s26, 8')
    A('v_lshrrev_b32 v2, 3, v1\nv_lshlrev_b32 v2, 10, v2\nv_lshrrev_b32 v3, 4, v1\nv_and_b32 v4, 7, v1')
    A('v_xor_b32 v5, v3, v4\nv_lshl_add_u32 v16, v5, 4, v2\nv_xor_b32 v5, 4, v5\nv_lshl_add_u32 v17, v5, 4, v2')
    for i in range(7, 0, -1): A(f'v_add_u32 v{16+i}, {i*8192 - (i%4)*1024}, v{16+(i&1)}')
    A('s_lshl_b32 s32, s27, 18\ns_lshl_b32 s33, s3, 16\ns_add_u32 s32, s32, s33\ns_lshl_b32 s33, s3, 13')
    A(g.issue_set(0)); A.mark('kv0')
    if ORD >= 3: fw(); A(g.issue_set(1)); A.mark('kv1')
    if ORD: pf()
    A('v_and_b32 v2, 31, v1\nv_lshlrev_b32 v3, 7, v2\nv_add_u32 v3, s33, v3\nv_bfe_u32 v2, v1, 1, 3\nv_lshrrev_b32 v4, 5, v1\nv_xor_b32 v2, v2, v4')
    for j in range(4): A(f'v_xor_b32 v4, {2*j}, v2\nv_lshl_add_u32 v{24+j}, v4, 4, v3')
    srd(A, SX, 4, 0, 4*MB); srd(A, SDB, 92, 0, 256); srd(A, SWQ, 8, 0, 8*MB, 4096)
    A('s_lshl_b32 s35, s28, 3\ns_lshl_b32 s36, s3, 1\ns_add_u32 s35, s35, s36')
    A('v_lshlrev_b32 v28, 5, v1\nv_lshlrev_b32 v5, 4, v1')
    pre1 = [['s_add_u32 s21, s21, 512', f'buffer_load_dword v29, v31, {s(SCK,4)}, s21 offen']]
    xl = [['s_lshl_b32 s34, s35, 11'] + [f'buffer_load_dwordx4 {v(XR+8*r+4*h,4)}, v28, {s(SX,4)}, s34 offen offset:{r*2048+h*16}' for r in range(2) for h in range(2)]]
    preq = [['v_lshrrev_b32 v252, 3, v0', 'v_lshlrev_b32 v252, 13, v252', 'v_and_b32 v253, 7, v0', 'v_lshl_add_u32 v252, v253, 7, v252'],
            ['s_lshl_b32 s34, s25, 18', 's_lshl_b32 s36, s24, 10', 's_add_u32 s34, s34, s36', 's_add_u32 s34, s34, 4096', f'buffer_load_dword v29, v252, {s(SWQ,4)}, s34 offen{NT}']]
    T = 244
    ln1 = []
    for r in range(2):
        for i in range(8): ln1 += [f'v_lshlrev_b32 v{XF+16*r+2*i}, 16, v{XR+8*r+i}', f'v_and_b32 v{XF+16*r+2*i+1}, 0xffff0000, v{XR+8*r+i}']
    for i in range(1, 16):
        for r in range(2): ln1.append(f'v_add_f32 v{T+r}, v{XF+16*r+i}, v{(XF+16*r) if i == 1 else T+r}')
    ln1 += allreduce([T, T+1], [T+2, T+3])
    for r in range(2): ln1.append(f'v_mul_f32 v{T+r}, {fl(1/1024)}, v{T+r}')
    for i in range(16):
        for r in range(2): ln1.append(f'v_sub_f32 v{XF+16*r+i}, v{XF+16*r+i}, v{T+r}')
    for i in range(16):
        for r in range(2): ln1.append(f'{"v_mul_f32" if i == 0 else "v_fmac_f32"} v{T+4+r}, v{XF+16*r+i}, v{XF+16*r+i}')
    ln1 += allreduce([T+4, T+5], [T+2, T+3])
    ln1 += [f'v_mov_b32 v{T}, {fl(1e-5)}', f'v_mov_b32 v{T+1}, {fl(1e-5)}', f'v_fmac_f32 v{T}, {fl(1/1024)}, v{T+4}', f'v_fmac_f32 v{T+1}, {fl(1/1024)}, v{T+5}',
            f'v_rsq_f32 v{T}, v{T}', f'v_rsq_f32 v{T+1}, v{T+1}', 's_nop 0']
    for i in range(16):
        for r in range(2): ln1.append(f'v_mul_f32 v{XF+16*r+i}, v{XF+16*r+i}, v{T+r}')
    E, CF, HS = 131072, 133120, 141312
    msig = [['s_waitcnt vmcnt(@ms@)'] + flag_store(2, 252, 'byte', SDB)]
    mpoll = [['v_lshlrev_b32 v31, 2, v1', poll_load(250, 31, SDB), ';@mark mp']]
    mchk = [['s_waitcnt vmcnt(@mp@)'] + poll_check(name+'_m', 250, 31, '0x01010101', SDB), ['v_lshlrev_b32 v2, 5, v0', f's_mov_b32 s34, {WS_PART}']]
    for k in range(4): mchk += [f'buffer_load_dwordx4 {v(CO+8*k,4)}, v2, {s(SWS,4)}, s34 offen sc1', [f'buffer_load_dwordx4 {v(CO+8*k+4,4)}, v2, {s(SWS,4)}, s34 offen offset:16 sc1', 's_add_u32 s34, s34, 8192']]
    csum = ['s_waitcnt vmcnt(@co@)', ['s_cmp_ge_u32 s3, 2', 's_cselect_b32 s34, 1.0, 0']]
    for k in range(1, 4): csum += [f'v_add_f32 v{CO+i}, v{CO+i}, v{CO+8*k+i}' for i in range(8)]
    for op in ('v_cvt_pk_bf16_f32 @, @, @', 'v_and_b32 @, 0xffff0000, @', 'v_add_f32 @, s34, @', 'v_cvt_pk_bf16_f32 @, @, @', 'v_and_b32 @, 0xffff0000, @', f'v_mul_f32 @, {fl(QSCALE)}, @'):
        csum += [op.replace('@', f'v{CO+i}') for i in range(8)]
    csum += ['v_lshlrev_b32 v2, 5, v0', f'v_add_u32 v2, {CF}, v2', f'ds_write_b128 v2, {v(CO,4)}', f'ds_write_b128 v2, {v(CO+4,4)} offset:16']
    crd = ['v_lshlrev_b32 v2, 6, v1', f'v_add_u32 v2, {CF}, v2'] + [f'ds_read_b128 {v(CO+16*k+4*i,4)}, v2 offset:{k*4096+i*16}' for k in range(2) for i in range(4)]
    app = []
    for r in range(2):
        app += [f'v_fma_f32 v{XF+16*r+i}, v{XF+16*r+i}, v{CO+16+i}, v{CO+i}' for i in range(16)]
        for gg in range(2): app += [f'v_cvt_pk_bf16_f32 v{XR+8*r+4*gg+i}, v{XF+16*r+f}, v{XF+16*r+f+1}' for i, f in enumerate((4*gg, 4*gg+2, 8+4*gg, 10+4*gg))]
    app += [['s_lshl_b32 s34, s3, 1', 'v_and_b32 v3, 15, v1', 'v_lshlrev_b32 v2, 8, v1'], 'v_xor_b32 v3, s34, v3', f'v_add_u32 v2, {HS}, v2']
    for r in range(2):
        for gg in range(2): app += [f'v_xor_b32 v4, {gg*8+r}, v3', 'v_lshl_add_u32 v4, v4, 4, v2', f'ds_write_b128 v4, {v(XR+8*r+4*gg,4)}']
    hrd = ['v_lshrrev_b32 v2, 4, v0', 'v_xor_b32 v2, v2, v0', 'v_lshlrev_b32 v2, 4, v2', f'v_add_u32 v2, {HS}, v2'] + [f'ds_read_b128 {v(XR+4*i,4)}, v2 offset:{i*4096}' for i in range(4)]
    hst = [['s_lshr_b32 s36, s28, 2', 's_lshl_b32 s36, s36, 16', 's_and_b32 s37, s28, 3', 's_lshl_b32 s37, s37, 7'], ['s_add_u32 s36, s36, s37', f's_add_u32 s36, s36, {WS_H}'],
           ['v_lshrrev_b32 v2, 3, v0', 'v_lshlrev_b32 v2, 9, v2', 'v_and_b32 v3, 7, v0', 'v_lshl_add_u32 v2, v3, 4, v2']]
    hst += [[f'buffer_store_dwordx4 {v(XR+4*i,4)}, v2, {s(SWS,4)}, s36 offen sc1', 's_add_u32 s36, s36, 16384'] for i in range(4)] + [';@mark hs']
    hsig = [['s_lshr_b32 s36, s28, 2', f's_lshl_b32 s36, s36, {2+FS}', 's_and_b32 s37, s28, 3', 's_add_u32 s36, s36, s37', f's_add_u32 s36, s36, {WS_FLG+F_H}'] + flag_store(36, 2, 'byte')]
    hpoll = [['s_sub_u32 s28, 15, s27', 's_lshl_b32 s28, s28, 2', 's_add_u32 s28, s28, s3', 's_lshl_b32 s29, s27, 2', 's_add_u32 s29, s29, s3'],
             ['v_mov_b32 v2, s28', 'v_mov_b32 v3, s29', 'v_and_b32 v4, 1, v1', 'v_cmp_eq_u32 vcc, 0, v4', 's_nop 1'],
             ['v_cndmask_b32 v2, v3, v2, vcc', f'v_lshlrev_b32 v2, {2+FS}, v2', f'v_add_u32 v251, {WS_FLG+F_H}, v2', poll_load(250, 251), ';@mark hp']]
    w0 = gemv(4, 4, GD, GC, GA, E)
    sides = {0: {0: g.issue_set(1) + [';@mark kv1'] + q(w0, 0, 5), 1: pre1 + xl + q(w0, 1, 5) + q(w0, 2, 5), 2: q(w0, 3, 5) + q(w0, 4, 5), 3: fin(32, GD, E)},
             1: {0: fin2(32, GD, 29, False) + [';@mark ms'], 2: msig, 3: q(ln1, 0, 5)},
             2: {0: q(ln1, 1, 5), 1: q(ln1, 2, 5), 2: mpoll + q(ln1, 3, 5), 3: q(ln1, 4, 5)},
             3: {1: mchk, 2: preq},
             4: {0: q(csum, 0, 3), 1: q(csum, 1, 3), 2: q(csum, 2, 3), 3: crd},
             5: {0: q(app, 0, 3), 1: q(app, 1, 3), 2: q(app, 2, 3), 3: hrd},
             6: {0: hst, 3: hsig}, 7: {3: hpoll}}
    MV = int(os.environ.get('MV', '2'))
    if MV:
        sides[2][2] = q(ln1, 3, 5); sides[3] = {2: mpoll, 3: mchk}; sides[4] = {0: preq, 1: q(csum, 0, 2), 2: q(csum, 1, 2), 3: crd}
    if MV == 2: sides[3] = {0: preq, 2: mpoll, 3: mchk}; del sides[4][0]
    if ORD == 3: sides[0] = {0: pre1 + xl, 1: ['s_waitcnt vmcnt(@wm@)'] + q(w0, 0, 2), 2: q(w0, 1, 2), 3: fin(32, GD, E)}
    if ORD == 4:
        sides[0] = {0: pre1 + ['buffer_load_dword v29, v30, s[76:79], s96 offen'], 1: ['s_waitcnt vmcnt(@wm@)'] + q(w0, 0, 2), 2: q(w0, 1, 2), 3: fin(32, GD, E)}
        sides[1] = {0: sides[1][0], 1: xl + [';@mark xl'], 2: msig}
        sides[2] = {ss: (['s_waitcnt vmcnt(@xl@)'] if ss == 0 else []) + q(ln1, ss, 6) for ss in range(4)}
        sides[3] = {0: preq + q(ln1, 4, 6), 1: q(ln1, 5, 6), 2: mpoll, 3: mchk}
        if os.environ.get('PQ', '1') == '1': sides[3][0] = q(ln1, 4, 6); sides[4][0] = preq
    if DF:
        late_pf = sides[0][0]
        sides[0][0] = [f'buffer_load_dword v29, v31, {s(SCK,4)}, s21 offen', 'buffer_load_dword v29, v30, s[76:79], s37 offen'] + (late_pf if DF == 2 else [])
        if DF == 1: sides[1][0] = late_pf + sides[1][0]
    if os.environ.get('XL') == '1': sides[0] = {0: xl, 1: ['s_waitcnt vmcnt(@wm@)'] + q(w0, 0, 2), 2: q(w0, 1, 2), 3: fin(32, GD, E)}; sides[1][1] = pre1
    if int(os.environ.get('EG', '0')):
        A(g.issue_set(1), ';@mark kv1', 's_waitcnt vmcnt(@wm@)', w0, 's_waitcnt lgkmcnt(0)\ns_barrier', fin(32, GD, E), 's_waitcnt lgkmcnt(0)', fin2(32, GD, 29, False), ';@mark ms')
        sides[0] = {0: pre1 + xl, 2: msig}
        sides[1] = {3: q(ln1, 0, 5)}
    A('s_waitcnt vmcnt(@kv0@)\ns_barrier'); A.stamp(1)
    A(g.reads(0, 0, 0))
    for sl in range(8):
        g.slab(A, sl, first=(sl == 0), loads=(sl < 6), last=(sl == 7), side=sides.get(sl), tag='kv', vm='@hs@' if sl == 6 else f'@kv{sl+1}@')
        A.stamp(2+sl)
```

```python
from core import *
from k1 import allreduce, bf16_round, LOG2E, QSCALE
SWQ = 72
def kv_store(mt, nt, h, t):
    ab = (mt*8+nt)*16 + 8*h
    off = WS_K + mt*8192 + (2*nt+h)*1024 if nt < 4 else WS_V + mt*8192 + h*4096 + (nt-4)*1024
    return ([f'v_accvgpr_read_b32 v{t+i}, a{ab+i}' for i in range(8)] + [f'v_cvt_pk_bf16_f32 v{t+8+i}, v{t+2*i}, v{t+2*i+1}' for i in range(4)] +
            [[f's_add_u32 s37, s36, {off}', f'buffer_store_dwordx4 {v(t+8,4)}, v5, {s(SWS,4)}, s37 offen sc1']])

def kv_off(mt, nt, h): return WS_K + mt*8192 + (2*nt+h)*1024 if nt < 4 else WS_V + mt*8192 + h*4096 + (nt-4)*1024
def kv_pack(mt, nt, h, t, d):
    ab = (mt*8+nt)*16 + 8*h
    return [f'v_accvgpr_read_b32 v{t+i}, a{ab+i}' for i in range(8)] + [f'v_cvt_pk_bf16_f32 v{d+i}, v{t+2*i}, v{t+2*i+1}' for i in range(4)]
def kv_put(mt, nt, h, d): return [[f's_add_u32 s37, s36, {kv_off(mt, nt, h)}', f'buffer_store_dwordx4 {v(d,4)}, v5, {s(SWS,4)}, s37 offen sc1']]
def phase_kv(A, name):
    A('s_load_dwordx16 s[4:19], s[0:1], 0\ns_load_dwordx8 s[84:91], s[0:1], 64\ns_load_dwordx4 s[92:95], s[0:1], 96')
    A('v_and_b32 v1, 63, v0\nv_lshrrev_b32 v2, 6, v0\ns_nop 0\nv_readfirstlane_b32 s3, v2')
    A('s_and_b32 s24, s2, 7\ns_lshr_b32 s25, s2, 3')
    A('s_and_b32 s26, s25, 3\ns_lshl_b32 s27, s24, 2\ns_add_u32 s26, s26, s27')
    A('s_lshr_b32 s27, s25, 2')
    A('s_lshl_b32 s28, s24, 5\ns_add_u32 s28, s28, s25')
    A('s_waitcnt lgkmcnt(0)\ns_mov_b32 s22, s94\ns_mov_b32 s23, s95\ns_mov_b32 s97, 0')
    SUK, SUV, SCK, SWM, SC, SDB = 40, 44, 48, 52, 56, 64
    srd(A, SWS, 22, 0, 96*MB); srd(A, SWM, 88, 0, 1024*6144*2); srd(A, SC, 86, 0, 2048)
    GD, GC, GA, XR, XF, CO = 160, 224, 228, 144, 192, 32
    srd(A, SUK, 10, 0, 4*MB, 4096); srd(A, SUV, 12, 0, 4*MB, 4096); srd(A, SCK, 6, 0, 2*MB)
    DF = int(os.environ.get('DF', '2'))
    def pf():
        A('s_getpc_b64 s[0:1]\nkn_cb:', codepf('kn_cb', 29, 32))
        A(f'v_lshlrev_b32 v31, 10, v1\ns_lshl_b32 s21, s25, 16\ns_lshl_b32 s34, s3, 7\ns_add_u32 s21, s21, s34')
        if not DF: A(f'buffer_load_dword v29, v31, {s(SCK,4)}, s21 offen')
        A('v_lshrrev_b32 v2, 4, v1\nv_lshlrev_b32 v2, 19, v2\nv_bfe_u32 v3, v1, 3, 1\nv_lshl_add_u32 v2, v3, 13, v2\nv_and_b32 v3, 7, v1\nv_lshl_add_u32 v2, v3, 7, v2')
        A('s_and_b32 s34, s3, 1\ns_lshl_b32 s34, s34, 21\ns_lshl_b32 s35, s25, 14\ns_add_u32 s34, s34, s35\ns_lshl_b32 s35, s24, 10\ns_add_u32 s34, s34, s35\ns_add_u32 s34, s34, 4096')
        A(f's_cmp_lt_u32 s3, 2\ns_cselect_b32 s76, s{SUK}, s{SUV}\ns_cselect_b32 s77, s{SUK+1}, s{SUV+1}\ns_mov_b32 s78, s{SUK+2}\ns_mov_b32 s79, s{SUK+3}\nv_mov_b32 v30, v2')
        if ORD == 4: A(f's_bitcmp1_b32 s3, 0\ns_cselect_b32 s96, s34, {OOB}\ns_cselect_b32 s34, {OOB}, s34')
        A('s_mov_b32 s37, s34' if DF else f'buffer_load_dword v29, v30, s[76:79], s34 offen{NT}')
    def fw():
        A(f'v_cmp_gt_u32 vcc, 8, v0\nv_mov_b32 v3, {OOB}\nv_lshlrev_b32 v2, {2+FS}, v0\nv_cndmask_b32 v2, v3, v2, vcc\nv_mov_b32 v3, 0')
        A(f's_lshl_b32 s34, s2, {5+FS}\ns_add_u32 s34, s34, {WS_FLG}\nbuffer_store_dword v3, v2, {s(SWS,4)}, s34 offen sc0 sc1')
        A('s_and_b32 s29, s28, 3\ns_lshl_b32 s34, s29, 9\nv_lshrrev_b32 v3, 2, v0\nv_lshlrev_b32 v2, 1, v3\nv_mul_u32_u24 v3, 12288, v3\nv_and_b32 v4, 3, v0\nv_lshl_add_u32 v3, v4, 4, v3')
        for j in range(4): A(f'buffer_load_ushort v{GC+j}, v2, {s(SC,4)}, s34 offen offset:{j*128}')
        A(f's_mul_i32 s34, s29, {256*12288}\ns_lshr_b32 s35, s28, 2\ns_lshl_b32 s35, s35, 6\ns_add_u32 s34, s34, s35')
        for j in range(4): A(f'buffer_load_dwordx4 {v(GD+4*j,4)}, v3, {s(SWM,4)}, s34 offen{NT}\ns_add_u32 s34, s34, {64*12288}')
        A.mark('wm')
        A(f's_lshl_b32 s29, s29, 13\ns_lshl_b32 s35, s35, 1\ns_add_u32 s29, s29, s35\ns_add_u32 s29, s29, {WS_PART}')
    ORD = int(os.environ.get('ORD', '4'))
    if ORD == 0: pf(); fw()
    if ORD == 2: fw()
    g = Gemm(MT=2, NT=8, G=1, KS=4, D=2, amode='lds', ldw=8192, acc=lambda mt, nt: a((mt*8+nt)*16, 16), bfr=64, afr=('v', 128),
             vB0=6, vB1=7, vD=8, vAD=16, vAR=24, sB=[SUK, SUK, SUV, SUV], sK=30, sWB=31, sA=SCK, sKA=32, sWA=33, bbase=65536,
             trans=lambda nt: nt < 4, ncol=lambda n64: (n64 & 1)*128)
    g.wnt = NT
    g.setup_w(A, 1, 2, 3)
    A('s_lshl_b32 s30, s26, 8')
    A('v_lshrrev_b32 v2, 3, v1\nv_lshlrev_b32 v2, 10, v2\nv_lshrrev_b32 v3, 4, v1\nv_and_b32 v4, 7, v1')
    A('v_xor_b32 v5, v3, v4\nv_lshl_add_u32 v16, v5, 4, v2\nv_xor_b32 v5, 4, v5\nv_lshl_add_u32 v17, v5, 4, v2')
    for i in range(7, 0, -1): A(f'v_add_u32 v{16+i}, {i*8192 - (i%4)*1024}, v{16+(i&1)}')
    A('s_lshl_b32 s32, s27, 18\ns_lshl_b32 s33, s3, 16\ns_add_u32 s32, s32, s33\ns_lshl_b32 s33, s3, 13')
    A(g.issue_set(0)); A.mark('kv0')
    if ORD >= 3: fw(); A(g.issue_set(1)); A.mark('kv1')
    if ORD: pf()
    A('v_and_b32 v2, 31, v1\nv_lshlrev_b32 v3, 7, v2\nv_add_u32 v3, s33, v3\nv_bfe_u32 v2, v1, 1, 3\nv_lshrrev_b32 v4, 5, v1\nv_xor_b32 v2, v2, v4')
    for j in range(4): A(f'v_xor_b32 v4, {2*j}, v2\nv_lshl_add_u32 v{24+j}, v4, 4, v3')
    srd(A, SX, 4, 0, 4*MB); srd(A, SDB, 92, 0, 256); srd(A, SWQ, 8, 0, 8*MB, 4096)
    A('s_lshl_b32 s35, s28, 3\ns_lshl_b32 s36, s3, 1\ns_add_u32 s35, s35, s36')
    A('v_lshlrev_b32 v28, 5, v1\nv_lshlrev_b32 v5, 4, v1')
    pre1 = [['s_add_u32 s21, s21, 512', f'buffer_load_dword v29, v31, {s(SCK,4)}, s21 offen']]
    xl = [['s_lshl_b32 s34, s35, 11'] + [f'buffer_load_dwordx4 {v(XR+8*r+4*h,4)}, v28, {s(SX,4)}, s34 offen offset:{r*2048+h*16}' for r in range(2) for h in range(2)]]
    preq = [['v_lshrrev_b32 v252, 3, v0', 'v_lshlrev_b32 v252, 13, v252', 'v_and_b32 v253, 7, v0', 'v_lshl_add_u32 v252, v253, 7, v252'],
            ['s_lshl_b32 s34, s25, 18', 's_lshl_b32 s36, s24, 10', 's_add_u32 s34, s34, s36', 's_add_u32 s34, s34, 4096', f'buffer_load_dword v29, v252, {s(SWQ,4)}, s34 offen{NT}']]
    T = 244
    ln1 = []
    for r in range(2):
        for i in range(8): ln1 += [f'v_lshlrev_b32 v{XF+16*r+2*i}, 16, v{XR+8*r+i}', f'v_and_b32 v{XF+16*r+2*i+1}, 0xffff0000, v{XR+8*r+i}']
    for i in range(1, 16):
        for r in range(2): ln1.append(f'v_add_f32 v{T+r}, v{XF+16*r+i}, v{(XF+16*r) if i == 1 else T+r}')
    ln1 += allreduce([T, T+1], [T+2, T+3])
    for r in range(2): ln1.append(f'v_mul_f32 v{T+r}, {fl(1/1024)}, v{T+r}')
    for i in range(16):
        for r in range(2): ln1.append(f'v_sub_f32 v{XF+16*r+i}, v{XF+16*r+i}, v{T+r}')
    for i in range(16):
        for r in range(2): ln1.append(f'{"v_mul_f32" if i == 0 else "v_fmac_f32"} v{T+4+r}, v{XF+16*r+i}, v{XF+16*r+i}')
    ln1 += allreduce([T+4, T+5], [T+2, T+3])
    ln1 += [f'v_mov_b32 v{T}, {fl(1e-5)}', f'v_mov_b32 v{T+1}, {fl(1e-5)}', f'v_fmac_f32 v{T}, {fl(1/1024)}, v{T+4}', f'v_fmac_f32 v{T+1}, {fl(1/1024)}, v{T+5}',
            f'v_rsq_f32 v{T}, v{T}', f'v_rsq_f32 v{T+1}, v{T+1}', 's_nop 0']
    for i in range(16):
        for r in range(2): ln1.append(f'v_mul_f32 v{XF+16*r+i}, v{XF+16*r+i}, v{T+r}')
    E, CF, HS = 131072, 133120, 141312
    msig = [['s_waitcnt vmcnt(@ms@)'] + flag_store(2, 252, 'byte', SDB)]
    mpoll = [['v_lshlrev_b32 v31, 2, v1', poll_load(250, 31, SDB), ';@mark mp']]
    mchk = [['s_waitcnt vmcnt(@mp@)'] + poll_check(name+'_m', 250, 31, '0x01010101', SDB), ['v_lshlrev_b32 v2, 5, v0', f's_mov_b32 s34, {WS_PART}']]
    for k in range(4): mchk += [f'buffer_load_dwordx4 {v(CO+8*k,4)}, v2, {s(SWS,4)}, s34 offen sc1', [f'buffer_load_dwordx4 {v(CO+8*k+4,4)}, v2, {s(SWS,4)}, s34 offen offset:16 sc1', 's_add_u32 s34, s34, 8192']]
    csum = ['s_waitcnt vmcnt(@co@)', ['s_cmp_ge_u32 s3, 2', 's_cselect_b32 s34, 1.0, 0']]
    for k in range(1, 4): csum += [f'v_add_f32 v{CO+i}, v{CO+i}, v{CO+8*k+i}' for i in range(8)]
    for op in ('v_cvt_pk_bf16_f32 @, @, @', 'v_and_b32 @, 0xffff0000, @', 'v_add_f32 @, s34, @', 'v_cvt_pk_bf16_f32 @, @, @', 'v_and_b32 @, 0xffff0000, @', f'v_mul_f32 @, {fl(QSCALE)}, @'):
        csum += [op.replace('@', f'v{CO+i}') for i in range(8)]
    csum += ['v_lshlrev_b32 v2, 5, v0', f'v_add_u32 v2, {CF}, v2', f'ds_write_b128 v2, {v(CO,4)}', f'ds_write_b128 v2, {v(CO+4,4)} offset:16']
    crd = ['v_lshlrev_b32 v2, 6, v1', f'v_add_u32 v2, {CF}, v2'] + [f'ds_read_b128 {v(CO+16*k+4*i,4)}, v2 offset:{k*4096+i*16}' for k in range(2) for i in range(4)]
    app = []
    for r in range(2):
        app += [f'v_fma_f32 v{XF+16*r+i}, v{XF+16*r+i}, v{CO+16+i}, v{CO+i}' for i in range(16)]
        for gg in range(2): app += [f'v_cvt_pk_bf16_f32 v{XR+8*r+4*gg+i}, v{XF+16*r+f}, v{XF+16*r+f+1}' for i, f in enumerate((4*gg, 4*gg+2, 8+4*gg, 10+4*gg))]
    app += [['s_lshl_b32 s34, s3, 1', 'v_and_b32 v3, 15, v1', 'v_lshlrev_b32 v2, 8, v1'], 'v_xor_b32 v3, s34, v3', f'v_add_u32 v2, {HS}, v2']
    for r in range(2):
        for gg in range(2): app += [f'v_xor_b32 v4, {gg*8+r}, v3', 'v_lshl_add_u32 v4, v4, 4, v2', f'ds_write_b128 v4, {v(XR+8*r+4*gg,4)}']
    hrd = ['v_lshrrev_b32 v2, 4, v0', 'v_xor_b32 v2, v2, v0', 'v_lshlrev_b32 v2, 4, v2', f'v_add_u32 v2, {HS}, v2'] + [f'ds_read_b128 {v(XR+4*i,4)}, v2 offset:{i*4096}' for i in range(4)]
    hst = [['s_lshr_b32 s36, s28, 2', 's_lshl_b32 s36, s36, 16', 's_and_b32 s37, s28, 3', 's_lshl_b32 s37, s37, 7'], ['s_add_u32 s36, s36, s37', f's_add_u32 s36, s36, {WS_H}'],
           ['v_lshrrev_b32 v2, 3, v0', 'v_lshlrev_b32 v2, 9, v2', 'v_and_b32 v3, 7, v0', 'v_lshl_add_u32 v2, v3, 4, v2']]
    hst += [[f'buffer_store_dwordx4 {v(XR+4*i,4)}, v2, {s(SWS,4)}, s36 offen sc1', 's_add_u32 s36, s36, 16384'] for i in range(4)] + [';@mark hs']
    hsig = [['s_lshr_b32 s36, s28, 2', f's_lshl_b32 s36, s36, {2+FS}', 's_and_b32 s37, s28, 3', 's_add_u32 s36, s36, s37', f's_add_u32 s36, s36, {WS_FLG+F_H}'] + flag_store(36, 2, 'byte')]
    hpoll = [['s_sub_u32 s28, 15, s27', 's_lshl_b32 s28, s28, 2', 's_add_u32 s28, s28, s3', 's_lshl_b32 s29, s27, 2', 's_add_u32 s29, s29, s3'],
             ['v_mov_b32 v2, s28', 'v_mov_b32 v3, s29', 'v_and_b32 v4, 1, v1', 'v_cmp_eq_u32 vcc, 0, v4', 's_nop 1'],
             ['v_cndmask_b32 v2, v3, v2, vcc', f'v_lshlrev_b32 v2, {2+FS}, v2', f'v_add_u32 v251, {WS_FLG+F_H}, v2', poll_load(250, 251), ';@mark hp']]
    w0 = gemv(4, 4, GD, GC, GA, E)
    sides = {0: {0: g.issue_set(1) + [';@mark kv1'] + q(w0, 0, 5), 1: pre1 + xl + q(w0, 1, 5) + q(w0, 2, 5), 2: q(w0, 3, 5) + q(w0, 4, 5), 3: fin(32, GD, E)},
             1: {0: fin2(32, GD, 29, False) + [';@mark ms'], 2: msig, 3: q(ln1, 0, 5)},
             2: {0: q(ln1, 1, 5), 1: q(ln1, 2, 5), 2: mpoll + q(ln1, 3, 5), 3: q(ln1, 4, 5)},
             3: {1: mchk, 2: preq},
             4: {0: q(csum, 0, 3), 1: q(csum, 1, 3), 2: q(csum, 2, 3), 3: crd},
             5: {0: q(app, 0, 3), 1: q(app, 1, 3), 2: q(app, 2, 3), 3: hrd},
             6: {0: hst, 3: hsig}, 7: {3: hpoll}}
    MV = int(os.environ.get('MV', '2'))
    if MV:
        sides[2][2] = q(ln1, 3, 5); sides[3] = {2: mpoll, 3: mchk}; sides[4] = {0: preq, 1: q(csum, 0, 2), 2: q(csum, 1, 2), 3: crd}
    if MV == 2: sides[3] = {0: preq, 2: mpoll, 3: mchk}; del sides[4][0]
    if ORD == 3: sides[0] = {0: pre1 + xl, 1: ['s_waitcnt vmcnt(@wm@)'] + q(w0, 0, 2), 2: q(w0, 1, 2), 3: fin(32, GD, E)}
    if ORD == 4:
        sides[0] = {0: pre1 + ['buffer_load_dword v29, v30, s[76:79], s96 offen'], 1: ['s_waitcnt vmcnt(@wm@)'] + q(w0, 0, 2), 2: q(w0, 1, 2), 3: fin(32, GD, E)}
        sides[1] = {0: sides[1][0], 1: xl + [';@mark xl'], 2: msig}
        sides[2] = {ss: (['s_waitcnt vmcnt(@xl@)'] if ss == 0 else []) + q(ln1, ss, 6) for ss in range(4)}
        sides[3] = {0: preq + q(ln1, 4, 6), 1: q(ln1, 5, 6), 2: mpoll, 3: mchk}
        PQ = int(os.environ.get('PQ', '7'))
        sides[3][0] = q(ln1, 4, 6)
        if PQ == 4: sides[4][0] = preq
        if PQ in (6, 7):
            h0 = [preq[0], preq[1][:-1] + ['s_cmp_lt_u32 s3, 2', f's_cselect_b32 s96, {OOB}, s34', f's_cselect_b32 s34, s34, {OOB}', preq[1][-1]]]
            h1 = [preq[1][-1].replace('s34', 's96')]
            if PQ == 6: sides[4][0] = h0; sides[5][0] = h1 + sides[5][0]
            else: sides[3][0] = h0 + sides[3][0]; sides[4][0] = h1
        if PQ == 5: sides[5][3] = sides[5][3] + preq
        if PQ == 2: sides[2][3] = preq + sides[2][3]
    if DF:
        late_pf = sides[0][0]
        sides[0][0] = [f'buffer_load_dword v29, v31, {s(SCK,4)}, s21 offen', 'buffer_load_dword v29, v30, s[76:79], s37 offen'] + (late_pf if DF == 2 else [])
        if DF == 1: sides[1][0] = late_pf + sides[1][0]
    if os.environ.get('XL') == '1': sides[0] = {0: xl, 1: ['s_waitcnt vmcnt(@wm@)'] + q(w0, 0, 2), 2: q(w0, 1, 2), 3: fin(32, GD, E)}; sides[1][1] = pre1
    if int(os.environ.get('EG', '0')):
        A(g.issue_set(1), ';@mark kv1', 's_waitcnt vmcnt(@wm@)', w0, 's_waitcnt lgkmcnt(0)\ns_barrier', fin(32, GD, E), 's_waitcnt lgkmcnt(0)', fin2(32, GD, 29, False), ';@mark ms')
        sides[0] = {0: pre1 + xl, 2: msig}
        sides[1] = {3: q(ln1, 0, 5)}
    A('s_waitcnt vmcnt(@kv0@)\ns_barrier'); A.stamp(1)
    A(g.reads(0, 0, 0))
    for sl in range(8):
        g.slab(A, sl, first=(sl == 0), loads=(sl < 6), last=(sl == 7), side=sides.get(sl), tag='kv', vm='@hs@' if sl == 6 else f'@kv{sl+1}@')
        A.stamp(2+sl)
```
